```python
import torch

def _softmax(x, axis=-1):
    return torch.softmax(x, dim=axis)
def _gelu(x):
    return torch.nn.functional.gelu(x, approximate="tanh")
def _silu(x):
    return torch.nn.functional.silu(x)
def _sigmoid(x):
    return torch.sigmoid(x)
def _layernorm(x, axis=-1, eps=1e-5):
    m = x.mean(dim=axis, keepdim=True)
    v = x.var(dim=axis, keepdim=True, unbiased=False)
    return (x - m) / torch.sqrt(v + eps)
def _scatter_add(tgt, idx, src, axis=0):
    return tgt.clone().index_add_(axis, idx, src)
def _segment_sum(src, seg, n):
    out = torch.zeros((n,) + src.shape[1:], dtype=src.dtype)
    return out.index_add_(0, seg, src)
def _pad(x, pw):
    flat = tuple(v for pair in reversed(pw) for v in pair)
    return torch.nn.functional.pad(x, flat)

kernel_name = 'parallel_sum__softmax_full_mha__mixer_channel_mlp__prompt'

def setup_inputs():

    _w = (lambda a: (lambda t: t.to(torch.bfloat16) if t.is_floating_point() else t)(torch.as_tensor(a)))
    def _A_setup():
        B, S, D = 1, 2048, 1024
        return {
            "x": _w((lambda *s: torch.randn(*s, dtype=torch.bfloat16) * 0.05)(B, S, D)),
            "wqkv": _w((lambda *s: torch.randn(*s, dtype=torch.bfloat16) * 0.05)(D, 3 * D)),
            "wo": _w((lambda *s: torch.randn(*s, dtype=torch.bfloat16) * 0.05)(D, D)),
        }
    _A_in = _A_setup()

    def _B_setup():
        B, S, D, F = 1, 2048, 1024, 3584
        return {
            "x": _w((lambda *s: torch.randn(*s, dtype=torch.bfloat16) * 0.05)(B, S, D)),
            "w1": _w((lambda *s: torch.randn(*s, dtype=torch.bfloat16) * 3.2)(D, F) * (D ** -0.5)),
            "b1": _w((lambda *s: torch.randn(*s, dtype=torch.bfloat16) * 1.6)(F)),
            "w2": _w((lambda *s: torch.randn(*s, dtype=torch.bfloat16) * 0.4)(F, D) * (F ** -0.5)),
            "b2": _w((lambda *s: torch.randn(*s, dtype=torch.bfloat16) * 0.8)(D)),
        }
    _B_in = _B_setup()

    return {
        "A_x": _A_in["x"],
        "A_wqkv": _A_in["wqkv"],
        "A_wo": _A_in["wo"],
        "B_x": _B_in["x"],
        "B_w1": _B_in["w1"],
        "B_b1": _B_in["b1"],
        "B_w2": _B_in["w2"],
        "B_b2": _B_in["b2"],
    }

def reference(A_x, A_wqkv, A_wo, B_x, B_w1, B_b1, B_w2, B_b2):
    def _A_ref(x, wqkv, wo):
        B, S, D = x.shape
        H = 32; Dh = D // H
        qkv = (lambda x, *d: x.permute(*d))((x @ wqkv).reshape(B, S, 3, H, Dh), 2, 0, 3, 1, 4)
        q, k, v = qkv[0], qkv[1], qkv[2]
        scale = Dh ** -0.5
        scores = torch.einsum("bhqd,bhkd->bhqk", q, k) * scale
        p = _softmax(scores, axis=-1)
        o = torch.einsum("bhqk,bhkd->bhqd", p, v)
        return (lambda x, *d: x.permute(*d))(o, 0, 2, 1, 3).reshape(B, S, D) @ wo

    def _B_ref(x, w1, b1, w2, b2):
        y = _layernorm(x, axis=-1)
        h = _gelu(torch.einsum("bsd,df->bsf", y, w1) + b1)
        return torch.einsum("bsf,fd->bsd", h, w2) + b2

    x = A_x
    xn = _layernorm(x, axis=-1)
    return x + _A_ref(xn, A_wqkv, A_wo) + _B_ref(xn, B_w1, B_b1, B_w2, B_b2)
```

```python
from common import *

Q = lambda qb, e: 16 + 8 * qb + 4 * e
CN = lambda qb: 32 + 16 * qb
SS = lambda qb: 64 + 16 * qb
PP = lambda qb: 96 + 8 * qb
OO = lambda qb: 112 + 16 * qb
LL = lambda qb: 144 + 4 * qb
KB = lambda t, e: 152 + 8 * (t % 2) + 4 * e
VB = lambda t, e: 168 + 8 * (t % 2) + 4 * e
SEL = 184
r4 = lambda b: f"v[{b}:{b+3}]"
r16 = lambda b: f"v[{b}:{b+15}]"
def mf32(d, x, y, c): return f"v_mfma_f32_32x32x16_bf16 {r16(d)}, {r4(x)}, {r4(y)}, {c if isinstance(c, str) else r16(c)}"
def mf16(d, x, y): return f"v_mfma_f32_16x16x32_bf16 {r4(d)}, {r4(x)}, {r4(y)}, {r4(d)}"

def softmax_ops(qb):
    s, p = SS(qb), PP(qb)
    e = [f"v_exp_f32 v{s+i}, v{s+i}" for i in range(16)]
    c = [f"v_cvt_pk_bf16_f32 v{p+i}, v{s+2*i}, v{s+2*i+1}" for i in range(8)]
    out = e[0:3]
    for i in range(6):
        out += [e[3+2*i], c[i], e[4+2*i]]
    out += [e[15], c[6], c[7]]
    return out

def rowmax(a, qb, dst, first):
    s = SS(qb)
    if first:
        a(f"v_max3_f32 v{dst}, v{s}, v{s+1}, v{s+2}"); rest = list(range(3, 16))
    else:
        rest = list(range(16))
    while len(rest) >= 2:
        a(f"v_max3_f32 v{dst}, v{dst}, v{s+rest[0]}, v{s+rest[1]}"); rest = rest[2:]
    if rest: a(f"v_max_f32 v{dst}, v{dst}, v{s+rest[0]}")

def set_cneg(a):
    for qb in range(2):
        m = 4 + qb
        a(f"v_mov_b32 v6, v{m}", "s_nop 1", f"v_permlane32_swap_b32 v6, v{m}", "s_nop 1", f"v_max_f32 v{m}, v{m}, v6",
          f"v_sub_f32 v{m}, 0, v{m}")
        for i in range(16): a(f"v_mov_b32 v{CN(qb)+i}, v{m}")

def zero_state(a):
    for qb in range(2):
        for i in range(16): a(f"v_mov_b32 v{OO(qb)+i}, 0")
        for i in range(4): a(f"v_mov_b32 v{LL(qb)+i}, 0")

def attn_body(a, lds_base=0, after_store=None, pfx="at"):
    sim = VmSim()
    a("s_lshl_b32 s36, s31, 3", "s_lshl_b32 s37, s33, 1", "s_add_u32 s36, s36, s37",
      "s_lshl_b32 s37, s30, 17", "s_lshl_b32 s38, s36, 11", "s_add_u32 s37, s37, s38", f"s_add_u32 s37, s37, {hex(WS_Q)}",
      "s_add_u32 s8, s28, s37", "s_addc_u32 s9, s29, 0", "s_mov_b32 s10, 4096", "s_mov_b32 s11, 0x20000",
      "s_lshl_b32 s37, s30, 18", f"s_add_u32 s37, s37, {hex(WS_KV)}",
      "s_add_u32 s12, s28, s37", "s_addc_u32 s13, s29, 0", "s_mov_b32 s14, 0x40000", "s_mov_b32 s15, 0x20000",
      "v_lshlrev_b32 v2, 4, v1")
    for qb in range(2):
        for e in range(2):
            a(f"buffer_load_dwordx4 {r4(Q(qb,e))}, v2, s[8:11], 0 offen offset:{2048*qb+1024*e}"); sim.issue('q')
    for e in range(2):
        a(f"buffer_load_dwordx4 {r4(KB(0,e))}, v2, s[12:15], 0 offen offset:{1024*e}"); sim.issue('q')
    a("s_lshl_b32 s38, s33, 13", "s_add_u32 s24, s38, 2048", f"s_add_u32 s25, s38, {lds_base}")
    def dma(c, p):
        pre = [f"s_add_u32 m0, s25, {4096*(p//4)}", f"s_add_u32 s39, s24, {4096*(p//4)}"] if p % 4 == 0 else []
        return pre + [('vm', ('C', c), f"buffer_load_dwordx4 v2, s[12:15], s39 offen offset:{1024*(p%4)} lds")]
    step = ["s_add_u32 s24, s24, 0x8000", "s_xor_b32 s25, s25, 0x8000"]
    def emit(ops):
        for x in ops:
            if isinstance(x, str): a(x)
            else: sim.issue(x[1]); a(x[2])
    for c in range(2):
        for p in range(8): emit(dma(c, p))
        a(*step)
    a("v_and_b32 v4, 3, v1", "v_bfe_u32 v5, v1, 2, 1", "v_bfe_u32 v6, v1, 4, 1", "v_xor_b32 v5, v5, v6", "v_or_b32 v4, v4, v5",
      "v_cmp_eq_u32 vcc, 0, v4", "v_mov_b32 v5, 0x3f803f80", "s_nop 0", f"v_cndmask_b32 v{SEL}, 0, v5, vcc")
    for i in range(1, 4): a(f"v_mov_b32 v{SEL+i}, v{SEL}")
    zero_state(a)
    for i in range(8): a(f"v_mov_b32 v{PP(1)+i}, 0", f"v_mov_b32 v{VB(1,0)+i}, 0")
    a(f"v_add_u32 v3, {lds_base}, v2" if lds_base else "v_mov_b32 v3, v2")
    a(f"s_waitcnt vmcnt({sim.need(['q'])})")
    for qb in range(2):
        a(mf32(SS(qb), KB(0,0), Q(qb,0), "0"), mf32(SS(qb), KB(0,1), Q(qb,1), SS(qb)))
    a("s_nop 11")
    rowmax(a, 0, 4, True); rowmax(a, 1, 5, True)
    set_cneg(a)
    a(f"s_waitcnt vmcnt({sim.need([('C', 0)])})", "s_barrier")
    def rd(n, what):
        off = (n % 8) * 4096
        if what == 'k': return [f"ds_read_b128 {r4(KB(n+1,e))}, v3 offset:{off+2048+1024*e}" for e in range(2)]
        return [f"ds_read_b128 {r4(VB(n,e))}, v3 offset:{off+1024*e}" for e in range(2)]
    a(*rd(0, 'k'), *rd(0, 'v'))
    a(mf32(SS(0), KB(0,0), Q(0,0), CN(0)), mf32(SS(0), KB(0,1), Q(0,1), SS(0)), "s_nop 9", "s_mov_b32 s26, 0")
    a(";MARK0", f"{pfx}_loop:")
    def half(qb, t, extra):
        o = 1 - qb
        ks, vs = (t, t - 1) if qb == 0 else (t + 1, t)
        m = [mf32(SS(o), KB(ks,0), Q(o,0), CN(o)), mf32(SS(o), KB(ks,1), Q(o,1), SS(o)),
             mf32(OO(o), VB(vs,0), PP(o), OO(o)), mf16(LL(o), SEL, PP(o)),
             mf32(OO(o), VB(vs,1), PP(o)+4, OO(o)), mf16(LL(o), SEL, PP(o)+4)]
        v = softmax_ops(qb)
        cuts = [0, 4, 8, 13, 15, 20, 24]
        for i in range(6):
            yield from extra.get(('pre', i), [])
            yield m[i]
            yield from v[cuts[i]:cuts[i+1]]
            yield from extra.get(i, [])
    def body(c):
        for tt in range(8):
            t = 8 * c + tt
            ea, eb = {}, {}
            if tt == 7:
                ea[1] = [('wait', 'c', [('C', c + 1)], " lgkmcnt(0)"), "s_barrier", "v_xor_b32 v3, 0x8000, v3"]
                ea[2] = rd(t + 1, 'k')
                ea[3] = dma(c + 2, 0) + dma(c + 2, 1)
                ea[4] = dma(c + 2, 2) + dma(c + 2, 3)
                eb[1] = dma(c + 2, 4) + dma(c + 2, 5)
                eb[2] = dma(c + 2, 6) + dma(c + 2, 7) + step
            else:
                ea[2] = rd(t + 1, 'k')
            eb[0] = rd(t + 1, 'v')
            eb[('pre', 0)] = ["s_waitcnt lgkmcnt(2)"]
            yield from half(0, t, ea)
            yield from half(1, t, eb)
    a(*rolled_loop(sim, body, 8))
    a("s_add_u32 s26, s26, 1", "s_cmp_lt_u32 s26, 8", f"s_cbranch_scc1 {pfx}_loop")
    a(mf32(OO(1), VB(63,0), PP(1), OO(1)), mf16(LL(1), SEL, PP(1)), mf32(OO(1), VB(63,1), PP(1)+4, OO(1)), mf16(LL(1), SEL, PP(1)+4),
      "s_waitcnt lgkmcnt(0)", "s_mov_b32 s37, 0x4e800000", "s_nop 11",
      f"v_cmp_nle_f32 vcc, v{LL(0)}, s37", f"v_cmp_nle_f32 s[40:41], v{LL(1)}, s37", "s_nop 3", "s_or_b64 vcc, vcc, s[40:41]",
      f"s_cbranch_vccnz {pfx}_slow", f"{pfx}_fin:", ";MARK1")
    srd(a, 8, 28, 29, AF_BYTES, WS_AF)
    a(f"s_mul_i32 s37, s36, {AF_TB}", "s_lshl_b32 s38, s30, 11", "s_add_u32 s37, s37, s38", f"s_add_u32 s38, s37, {AF_TB}")
    for qb in range(2):
        a(f"v_rcp_f32 v4, v{LL(qb)}", "s_nop 0", "v_mov_b32 v5, v4")
        o, p = OO(qb), PP(qb)
        for i in range(8): a(f"v_pk_mul_f32 v[{o+2*i}:{o+2*i+1}], v[{o+2*i}:{o+2*i+1}], v[4:5]")
        for i in range(8): a(f"v_cvt_pk_bf16_f32 v{p+i}, v{o+2*i}, v{o+2*i+1}")
        for e in range(2):
            a(f"buffer_store_dwordx4 {r4(p+4*e)}, v2, s[8:11], s{37+qb} offen offset:{1024*e}" + (" sc1" if after_store else knob("AT_ST")))
    if after_store: after_store(a)
    a("s_endpgm")
    a(f"{pfx}_slow:", "s_waitcnt vmcnt(0)", "s_mov_b32 s39, 0", "v_mov_b32 v4, 0xff800000", "v_mov_b32 v5, 0xff800000", f"{pfx}_slow_max:")
    for e in range(2): a(f"buffer_load_dwordx4 {r4(KB(0,e))}, v2, s[12:15], s39 offen offset:{1024*e}")
    a("s_waitcnt vmcnt(0)")
    for qb in range(2): a(mf32(SS(qb), KB(0,0), Q(qb,0), "0"), mf32(SS(qb), KB(0,1), Q(qb,1), SS(qb)))
    a("s_nop 11")
    rowmax(a, 0, 4, False); rowmax(a, 1, 5, False)
    a("s_add_u32 s39, s39, 4096", "s_cmp_lt_u32 s39, 0x40000", f"s_cbranch_scc1 {pfx}_slow_max")
    set_cneg(a); zero_state(a)
    a("s_mov_b32 s39, 0", f"{pfx}_slow_pv:")
    for e in range(2):
        a(f"buffer_load_dwordx4 {r4(KB(0,e))}, v2, s[12:15], s39 offen offset:{1024*e}",
          f"buffer_load_dwordx4 {r4(VB(0,e))}, v2, s[12:15], s39 offen offset:{2048+1024*e}")
    a("s_waitcnt vmcnt(0)")
    for qb in range(2): a(mf32(SS(qb), KB(0,0), Q(qb,0), CN(qb)), mf32(SS(qb), KB(0,1), Q(qb,1), SS(qb)))
    a("s_nop 11")
    for qb in range(2): a(*softmax_ops(qb))
    a("s_nop 1")
    for qb in range(2):
        a(mf32(OO(qb), VB(0,0), PP(qb), OO(qb)), mf16(LL(qb), SEL, PP(qb)), mf32(OO(qb), VB(0,1), PP(qb)+4, OO(qb)), mf16(LL(qb), SEL, PP(qb)+4))
    a("s_add_u32 s39, s39, 4096", "s_cmp_lt_u32 s39, 0x40000", f"s_cbranch_scc1 {pfx}_slow_pv", "s_nop 11", f"s_branch {pfx}_fin")

def gen_attn():
    a = Asm()
    a("s_cmp_ge_u32 s2, 256", "s_cbranch_scc0 at_go", "s_endpgm", "at_go:",
      "s_load_dwordx2 s[28:29], s[0:1], 80",
      "v_lshrrev_b32 v1, 6, v0", "s_and_b32 s3, s2, 7", "v_readfirstlane_b32 s33, v1", "v_and_b32 v1, 63, v0",
      "s_lshr_b32 s31, s2, 3", "s_lshr_b32 s30, s31, 3", "s_lshl_b32 s3, s3, 2", "s_add_u32 s30, s30, s3", "s_and_b32 s31, s31, 7",
      "s_waitcnt lgkmcnt(0)")
    attn_body(a)
    return a.text(), dict(vgpr=192, accum=192, grid=256, block=256, lds=65536)
```

```python
S, D, H, F = 2048, 1024, 32, 3584
WS_XN, WS_Y, WS_Q, WS_KV, WS_AF = 0x0, 0x400000, 0x800000, 0xC00000, 0x1400000
AF_KS = 288
AF_TB = AF_KS * 1024
AF_BYTES = 64 * AF_TB
WS_FLAG = 0x2800000

class Asm:
    def __init__(self):
        self.L = []
    def __call__(self, *lines):
        for s in lines:
            for t in s.split("\n"):
                t = t.strip()
                if t:
                    self.L.append(t if t.endswith(":") else "    " + t)
    def text(self):
        return "\n".join(self.L) + "\n"

def srd(a, d, lo, hi, size, off=0):
    if off:
        a(f"s_add_u32 s{d}, s{lo}, {hex(off)}", f"s_addc_u32 s{d+1}, s{hi}, 0")
    else:
        a(f"s_mov_b32 s{d}, s{lo}", f"s_mov_b32 s{d+1}, s{hi}")
    a(f"s_mov_b32 s{d+2}, {hex(size)}", f"s_mov_b32 s{d+3}, 0x20000")

class VmSim:
    def __init__(self):
        self.n = 0
        self.pos = {}
    def issue(self, tag=None):
        self.n += 1
        if tag is not None:
            self.pos[tag] = self.n
    def need(self, tags):
        p = [self.pos[t] for t in tags if t in self.pos]
        if not p:
            return None
        return self.n - max(p)

def rolled_loop(sim, body, iters):
    texts, waits = [], {}
    for it in range(iters):
        t = []
        for x in body(it):
            if isinstance(x, str):
                t.append(x)
            elif x[0] == 'vm':
                sim.issue(x[1]); t.append(x[2])
            else:
                n = sim.need(x[2])
                if n is not None:
                    waits[x[1]] = min(waits.get(x[1], 63), n)
                t.append(('W', x[1], x[3]))
        texts.append(t)
    for t in texts[1:]:
        assert t == texts[0], "loop body differs between iterations"
    return [x if isinstance(x, str) else f"s_waitcnt vmcnt({waits[x[1]]}){x[2]}" for x in texts[0]]

def kernel_header(name):
    return f".globl {name}\n.p2align 8\n.type {name},@function\n{name}:\n"

def kernel_desc(name, vgpr, accum, sgpr=102):
    return (f".p2align 6\n.amdhsa_kernel {name}\n  .amdhsa_next_free_vgpr {vgpr}\n  .amdhsa_next_free_sgpr {sgpr}\n"
            f"  .amdhsa_accum_offset {accum}\n  .amdhsa_group_segment_fixed_size 0\n  .amdhsa_kernarg_size 88\n"
            f"  .amdhsa_user_sgpr_count 2\n  .amdhsa_user_sgpr_kernarg_segment_ptr 1\n"
            f"  .amdhsa_system_sgpr_workgroup_id_x 1\n.end_amdhsa_kernel\n")
```

```python
from common import *

QSCALE = 0x3e8293ee
GC0, GC1 = 0xc0135761, 0xbdd2d3e8

def role(a, name, NB, swapped, kind):
    NP = NB // 2
    SLOT = 64 * NB * 64
    ldb = 6144 if kind != 'h' else 7168
    nv = min(2 * NB, 14)
    vbase = 256 - 16 * nv
    def acc(nb, t):
        i = nb * 2 + t
        return ('v', vbase + 16 * i) if i < nv else ('a', 96 + 16 * (i - nv))
    def rng(p, n): return f"{p[0]}[{p[1]}:{p[1]+n-1}]"
    XR = lambda u, t: ('a', (u % 8) * 8 + 4 * t)
    WR = lambda nb: ('a', 64 + 4 * nb)
    a(f"{name}:")
    if kind == 'h':
        srd(a, 8, 6, 7, 1024 * ldb); srd(a, 20, 34, 35, F * 2)
    else:
        srd(a, 8, 4, 5, 1024 * ldb)
    xoff = WS_Y if kind == 'h' else WS_XN
    a("s_lshl_b32 s36, s31, 3", "s_lshl_b32 s37, s33, 1", "s_add_u32 s36, s36, s37",
      "s_lshl_b32 s37, s36, 16", f"s_add_u32 s37, s37, {hex(xoff)}",
      "s_add_u32 s12, s28, s37", "s_addc_u32 s13, s29, 0", "s_mov_b32 s14, 0x10000", "s_mov_b32 s15, 0x20000",
      "s_add_u32 s16, s12, 0x10000", "s_addc_u32 s17, s13, 0", "s_mov_b32 s18, 0x10000", "s_mov_b32 s19, 0x20000")
    sim = VmSim()
    if kind == 'h':
        a("v_lshrrev_b32 v6, 5, v1", "v_lshlrev_b32 v6, 3, v6", "s_lshl_b32 s37, s30, 1", "v_add_u32 v6, s37, v6")
        for nb in range(NB):
            for g in range(4):
                r = 8 + 8 * nb + 2 * g
                a(f"buffer_load_dwordx2 v[{r}:{r+1}], v6, s[20:23], 0 offen offset:{64*nb+16*g}"); sim.issue('bias')
    a("v_lshlrev_b32 v2, 4, v1",
      "v_lshrrev_b32 v3, 5, v1", "v_lshlrev_b32 v3, 2, v3", "v_bfe_u32 v4, v1, 2, 2", "v_add_u32 v3, v3, v4",
      "s_lshl_b32 s37, s33, 4", "v_add_u32 v3, s37, v3", f"v_mul_u32_u24 v3, {ldb}, v3",
      "v_bfe_u32 v4, v1, 4, 1", "v_lshl_add_u32 v3, v4, 6, v3", "v_and_b32 v4, 3, v1", "v_lshl_add_u32 v3, v4, 4, v3",
      "s_lshl_b32 s37, s30, 1", "v_add_u32 v3, s37, v3", f"v_add_u32 v4, {8*ldb}, v3",
      "v_lshrrev_b32 v5, 5, v1", f"v_mul_u32_u24 v5, {NP*1024}, v5", "v_bfe_u32 v7, v1, 2, 2", "v_lshl_add_u32 v5, v7, 6, v5",
      "v_bfe_u32 v7, v1, 4, 1", "v_lshl_add_u32 v5, v7, 5, v5", "v_and_b32 v7, 3, v1", "v_lshl_add_u32 v5, v7, 3, v5",
      f"v_add_u32 v7, {2*SLOT}, v5",
      f"s_mul_i32 s38, s33, {2*NP*1024}", "s_mov_b32 s24, 0", "s_mov_b32 s25, 0")
    def dma(stage, p):
        kpl, np_ = divmod(p, NP)
        m0 = (stage % 4) * SLOT + p * 1024 - np_ * 128
        return [f"s_add_u32 m0, s38, {m0}", "s_nop 0",
                ('vm', ('W', stage), f"buffer_load_dwordx4 v{3+kpl}, s[8:11], s24 offen offset:{np_*128} lds")]
    def xld(u):
        return [('vm', ('X', u), f"buffer_load_dwordx4 {rng(XR(u,t),4)}, v2, s[{12+4*t}:{15+4*t}], s25 offen offset:{(u%4)*1024}") for t in range(2)]
    def wrd(u, nb):
        s, j = divmod(u, 4)
        sl = s % 4
        off = (sl % 2) * SLOT + (2 * j * NP + nb // 2) * 1024 + (nb % 2) * 256
        r = WR(nb)[1]
        v = 5 if sl < 2 else 7
        return [f"ds_read_b64_tr_b16 a[{r+2*i}:{r+2*i+1}], v{v} offset:{off+512*i}" for i in range(2)]
    NPC = 2 * NP
    first, second = list(range(NPC // 2)), list(range(NPC // 2, NPC))
    def emit(ops):
        for x in ops:
            if isinstance(x, str): a(x)
            else: sim.issue(x[1]); a(x[2])
    stepW, stepX = f"s_add_u32 s24, s24, {64*ldb}", "s_add_u32 s25, s25, 4096"
    for u in range(-9, 0):
        s, j = divmod(u, 4)
        if u + 7 >= 0:
            emit(xld(u + 7))
            if j == 0: a(stepX)
        if j == 3:
            for p in first: emit(dma(s + 3, p))
        if j == 0:
            for p in second: emit(dma(s + 2, p))
            a(stepW)
    if kind == 'h':
        a(f"s_waitcnt vmcnt({sim.need(['bias'])})", "s_mov_b32 s37, 0xffff0000")
        for nb in range(NB):
            for t in range(2):
                b = acc(nb, t)[1]
                for i in range(8):
                    r = 8 + 8 * nb + i
                    a(f"v_lshlrev_b32 v{b+2*i}, 16, v{r}", f"v_and_b32 v{b+2*i+1}, s37, v{r}")
    else:
        for nb in range(NB):
            for t in range(2):
                k, b = acc(nb, t)
                for i in range(16):
                    a(f"v_mov_b32 v{b+i}, 0" if k == 'v' else f"v_accvgpr_write_b32 a{b+i}, 0")
    a(f"s_waitcnt vmcnt({sim.need([('W', 0)])})", "s_barrier")
    for nb in range(NB): emit(wrd(0, nb))
    a("s_mov_b32 s26, 0", f"{name}_loop:")
    def body(it):
        for u in range(16 * it, 16 * it + 16):
            s, j = divmod(u, 4)
            extra = [xld(u + 7) + ([stepX] if j == 0 else [])]
            if j == 3: extra += [dma(s + 3, p) for p in first]
            if j == 0: extra += [dma(s + 2, p) for p in second]; extra[-1] = extra[-1] + [stepW]
            yield ('wait', ('x', u % 16), [('X', u)], "")
            for nb in range(NB):
                yield f"s_waitcnt lgkmcnt({2*(NB-1)})"
                for t in range(2):
                    c, w, x = rng(acc(nb, t), 16), rng(WR(nb), 4), rng(XR(u, t), 4)
                    yield f"v_mfma_f32_32x32x16_bf16 {c}, {w}, {x}, {c}" if swapped else f"v_mfma_f32_32x32x16_bf16 {c}, {x}, {w}, {c}"
                if j == 3 and nb == 0:
                    yield ('wait', ('w', u % 16), [('W', s + 1)], "")
                    yield "s_barrier"
                yield from wrd(u + 1, nb)
                if 1 <= nb <= len(extra):
                    yield from extra[nb - 1]
            assert len(extra) <= NB - 1
    a(*rolled_loop(sim, body, 4))
    a("s_add_u32 s26, s26, 1", "s_cmp_lt_u32 s26, 4", f"s_cbranch_scc1 {name}_loop")
    a("s_waitcnt vmcnt(0) lgkmcnt(0)", "s_nop 7", "s_nop 7")
    if kind == 'h':
        srd(a, 8, 28, 29, AF_BYTES, WS_AF)
        a(f"s_mul_i32 s37, s36, {AF_TB}", "s_lshl_b32 s39, s30, 6", "s_add_u32 s37, s37, s39", "s_add_u32 s37, s37, 0x10000")
        tstride, nbstride, o0 = AF_TB, 2048, 0
        for i, c in enumerate((GC0, GC0, GC1, GC1, 0x3f800000, 0x3f800000)):
            a(f"v_mov_b32 v{8+i}, {hex(c)}")
    elif kind == 'q':
        srd(a, 8, 28, 29, S * D * 2, WS_Q)
        a("s_lshl_b32 s37, s36, 11", "s_lshl_b32 s39, s30, 12", "s_add_u32 s37, s37, s39")
        tstride, nbstride, o0 = 2048, 64 * 2048, 0
        a(f"v_mov_b32 v8, {hex(QSCALE)}", f"v_mov_b32 v9, {hex(QSCALE)}")
    else:
        srd(a, 8, 28, 29, 2 * S * D * 2, WS_KV)
        a("s_lshl_b32 s37, s36, 12", "s_and_b32 s39, s30, 1023", "s_lshl_b32 s39, s39, 13", "s_add_u32 s37, s37, s39")
        tstride, nbstride, o0 = 4096, 64 * 4096, (2048 if kind == 'v' else 0)
    blk = 0
    for nb in range(NB):
        for t in range(2):
            k, b = acc(nb, t)
            if k == 'a':
                dst = vbase + 16 * (blk % 2)
                for i in range(16): a(f"v_accvgpr_read_b32 v{dst+i}, a{b+i}")
                b = dst
            P = 16 + 8 * (blk % 2)
            pr = lambda r: f"v[{r}:{r+1}]"
            if kind == 'h':
                T, E = 32, 48
                for i in range(8): a(f"v_pk_mul_f32 {pr(T+2*i)}, {pr(b+2*i)}, {pr(b+2*i)}")
                for i in range(8): a(f"v_pk_fma_f32 {pr(T+2*i)}, {pr(T+2*i)}, v[10:11], v[8:9]")
                for i in range(8): a(f"v_pk_mul_f32 {pr(T+2*i)}, {pr(T+2*i)}, {pr(b+2*i)}")
                for i in range(16): a(f"v_exp_f32 v{E+i}, v{T+i}")
                for i in range(8): a(f"v_pk_add_f32 {pr(E+2*i)}, {pr(E+2*i)}, v[12:13]")
                for i in range(16): a(f"v_rcp_f32 v{T+i}, v{E+i}")
                for i in range(8): a(f"v_pk_mul_f32 {pr(b+2*i)}, {pr(b+2*i)}, {pr(T+2*i)}")
            elif kind == 'q':
                for i in range(8): a(f"v_pk_mul_f32 {pr(b+2*i)}, {pr(b+2*i)}, v[8:9]")
            for i in range(8): a(f"v_cvt_pk_bf16_f32 v{P+i}, v{b+2*i}, v{b+2*i+1}")
            a(f"s_add_u32 s39, s37, {nb*nbstride + t*tstride}")
            for e in range(2):
                a(f"buffer_store_dwordx4 v[{P+4*e}:{P+4*e+3}], v2, s[8:11], s39 offen offset:{o0+1024*e}")
            blk += 1
    a("s_endpgm")

def gen_gemm1():
    a = Asm()
    a("s_cmp_ge_u32 s2, 256", "s_cbranch_scc1 g1_done",
      "s_load_dwordx2 s[4:5], s[0:1], 8", "s_load_dwordx2 s[6:7], s[0:1], 32", "s_load_dwordx2 s[34:35], s[0:1], 40",
      "s_load_dwordx2 s[28:29], s[0:1], 80",
      "v_lshrrev_b32 v1, 6, v0", "s_and_b32 s3, s2, 7", "v_readfirstlane_b32 s33, v1", "v_and_b32 v1, 63, v0",
      "s_lshr_b32 s31, s2, 3", "s_lshr_b32 s32, s31, 3", "s_lshl_b32 s3, s3, 2", "s_add_u32 s32, s32, s3", "s_and_b32 s31, s31, 7",
      "s_cmp_ge_u32 s32, 31", "s_cbranch_scc1 g1_done",
      "s_waitcnt lgkmcnt(0)",
      "s_cmp_ge_u32 s32, 12", "s_cbranch_scc1 g1_selh",
      "s_lshl_b32 s30, s32, 8",
      "s_cmp_ge_u32 s32, 8", "s_cbranch_scc1 g1_jv",
      "s_cmp_ge_u32 s32, 4", "s_cbranch_scc1 g1_jk",
      "s_branch g1_q",
      "g1_jk:", "s_branch g1_k", "g1_jv:", "s_branch g1_v",
      "g1_done:", "s_endpgm",
      "g1_selh:", "s_sub_u32 s30, s32, 12", "s_mul_i32 s30, s30, 192", f"s_min_u32 s30, s30, {F-192}")
    role(a, "g1_h", 6, True, 'h')
    role(a, "g1_q", 8, True, 'q')
    role(a, "g1_k", 8, True, 'k')
    role(a, "g1_v", 8, False, 'v')
    return a.text(), dict(vgpr=384, accum=256, grid=256, block=256, lds=131072)
```

```python
from common import *

def gemm2_body(a, XD=8, ACC=64, pfx="g2", lds_base=0):
    WD = 8
    acc = lambda j, fb: ACC + 32 * j + 16 * fb
    XR = lambda u, j: (u % XD) * 16 + 4 * j
    WR = lambda u, fb: 16 * XD + 8 * (u % 2) + 4 * fb
    sim = VmSim()
    srd(a, 8, 6, 7, F * D * 2)
    srd(a, 12, 28, 29, AF_BYTES, WS_AF)
    srd(a, 16, 34, 35, S * D * 2)
    srd(a, 20, 40, 41, D * 2)
    a("v_lshlrev_b32 v9, 4, v1", "s_lshl_b32 s36, s31, 2")
    for j in range(4):
        a(f"s_add_u32 s37, s33, {j}", "s_and_b32 s37, s37, 3", "s_add_u32 s37, s37, s36", f"s_mul_i32 s37, s37, {AF_TB}",
          f"v_add_u32 v{2+j}, s37, v9")
    a("v_lshrrev_b32 v6, 5, v1", "v_lshlrev_b32 v6, 2, v6", "v_bfe_u32 v7, v1, 2, 2", "v_add_u32 v6, v6, v7", "v_lshlrev_b32 v6, 11, v6",
      "v_bfe_u32 v7, v1, 4, 1", "v_lshl_add_u32 v6, v7, 6, v6", "v_and_b32 v7, 3, v1", "v_lshl_add_u32 v6, v7, 4, v6",
      "s_lshl_b32 s37, s30, 7", "v_add_u32 v6, s37, v6", f"v_add_u32 v7, {16384-1024}, v6",
      f"s_mul_i32 s38, s33, 24576", f"s_add_u32 s38, s38, {lds_base}",
      "v_lshrrev_b32 v8, 5, v1", "v_lshlrev_b32 v8, 9, v8", "v_bfe_u32 v10, v1, 2, 2", "v_lshl_add_u32 v8, v10, 6, v8",
      "v_bfe_u32 v10, v1, 4, 1", "v_lshl_add_u32 v8, v10, 5, v8", "v_and_b32 v10, 3, v1", "v_lshl_add_u32 v8, v10, 3, v8",
      "v_add_u32 v8, s38, v8",
      f"s_mul_i32 s24, s33, {896*2048}", f"s_mul_i32 s25, s33, {56*1024}", f"s_add_u32 s25, s25, {64*1024}",
      "s_lshl_b32 s44, s33, 19", "s_lshl_b32 s45, s33, 14")
    def dma(u):
        return [[f"s_add_u32 m0, s38, {(u % WD) * 2048}", "s_nop 0", ('vm', ('W', u), "buffer_load_dwordx4 v6, s[8:11], s24 offen lds")],
                [('vm', ('W', u), "buffer_load_dwordx4 v7, s[8:11], s24 offen offset:1024 lds"), "s_add_u32 s24, s24, 0x8000"]]
    def xld(u):
        o = [[('vm', ('X', u), f"buffer_load_dwordx4 a[{XR(u,j)}:{XR(u,j)+3}], v{2+j}, s[12:15], s25 offen offset:{(u%4)*1024}")] for j in range(4)]
        if u % 4 == 3: o[3].append("s_add_u32 s25, s25, 4096")
        return o
    def wrd(u, fb):
        r = WR(u, fb)
        return [f"ds_read_b64_tr_b16 a[{r+2*i}:{r+2*i+1}], v8 offset:{(u%WD)*2048+1024*i+256*fb}" for i in range(2)]
    def emit(ops):
        for x in ops:
            if isinstance(x, str): a(x)
            elif x[0] == 'vm': sim.issue(x[1]); a(x[2])
            else:
                n = sim.need(x[2])
                a(f"s_waitcnt vmcnt({min(n, 63)}){x[3]}")
    for u in range(-(WD - 1), 0):
        for x in dma(u + WD - 1): emit(x)
        if u + XD - 1 >= 0:
            for x in xld(u + XD - 1): emit(x)
        if u == -(WD - 1):
            a("s_lshl_b32 s37, s36, 5", "s_lshl_b32 s39, s33, 5", "s_add_u32 s37, s37, s39", "v_and_b32 v10, 31, v1", "v_add_u32 v10, s37, v10",
              "v_lshlrev_b32 v10, 11, v10", "v_lshrrev_b32 v11, 5, v1", "v_lshlrev_b32 v11, 4, v11", "s_lshl_b32 s37, s30, 7",
              "v_add_u32 v11, s37, v11", "v_add_u32 v10, v10, v11")
            for q in range(4):
                emit([('vm', 'res', f"buffer_load_dwordx4 v[{16+4*q}:{19+4*q}], v10, s[16:19], 0 offen offset:{32*q}"),
                      ('vm', 'res', f"buffer_load_dwordx4 v[{32+4*q}:{35+4*q}], v11, s[20:23], 0 offen offset:{32*q}")])
    for i in range(32, 128): a(f"v_mov_b32 v{ACC+i}, 0")
    emit([('wait', 0, ['res'], "")])
    a("s_mov_b32 s37, 0xffff0000")
    for q in range(4):
        d = ACC + 8 * q
        for i in range(4):
            a(f"v_lshlrev_b32 v{d+2*i}, 16, v{16+4*q+i}", f"v_and_b32 v{d+2*i+1}, s37, v{16+4*q+i}",
              f"v_lshlrev_b32 v12, 16, v{32+4*q+i}", f"v_and_b32 v13, s37, v{32+4*q+i}",
              f"v_add_f32 v{d+2*i}, v{d+2*i}, v12", f"v_add_f32 v{d+2*i+1}, v{d+2*i+1}, v13")
    a("s_nop 1")
    for q in range(4):
        for i in range(4): a(f"v_permlane32_swap_b32 v{ACC+8*q+i}, v{ACC+8*q+4+i}")
    emit([('wait', 0, [('W', 0)], "")])
    emit(wrd(0, 0) + wrd(0, 1))
    def step(u, last):
        ex = [[] for _ in range(8)]
        if u + WD - 1 < last:
            if (u + WD - 1) % 8 == 0:
                ex[0] += ["s_cmp_eq_u32 s26, 6", "s_cselect_b32 s8, s4, s8", "s_cselect_b32 s9, s5, s9",
                          f"s_cselect_b32 s10, {D*D*2}, s10", "s_cselect_b32 s24, s44, s24"]
            d = dma(u + WD - 1); ex[0] += d[0]; ex[1] += d[1]
        if u + 1 < last:
            ex[2] += [('wait', ('w', u % 8), [('W', u + 1)], "")] + wrd(u + 1, 0); ex[3] += wrd(u + 1, 1)
        if u + XD - 1 < last:
            if (u + XD - 1) % 8 == 0: ex[4] += ["s_cmp_eq_u32 s26, 6", "s_cselect_b32 s25, s45, s25"]
            for j, x in enumerate(xld(u + XD - 1)): ex[4 + j] += x
        yield ('wait', ('x', u % 8), [('X', u)], " lgkmcnt(0)")
        for fb in range(2):
            for j in range(4):
                c = f"v[{acc(j,fb)}:{acc(j,fb)+15}]"
                yield f"v_mfma_f32_32x32x16_bf16 {c}, a[{WR(u,fb)}:{WR(u,fb)+3}], a[{XR(u,j)}:{XR(u,j)+3}], {c}"
                yield from ex[4 * fb + j]
    def body(it):
        for u in range(8 * it, 8 * it + 8): yield from step(u, 1000)
    a("s_mov_b32 s26, 0", f"{pfx}_loop:")
    a(*rolled_loop(sim, body, 8))
    a("s_add_u32 s26, s26, 1", "s_cmp_lt_u32 s26, 8", f"s_cbranch_scc1 {pfx}_loop")
    for u in range(64, 72): emit(step(u, 72))
    srd(a, 8, 42, 43, S * D * 2)
    a("v_add_u32 v2, s38, v9")
    for j in range(1, 4):
        a(f"s_sub_u32 s37, s33, {j}", "s_and_b32 s37, s37, 3", "s_mul_i32 s37, s37, 24576", f"s_add_u32 s37, s37, {lds_base + (j-1)*8192}",
          f"v_add_u32 v{2+j}, s37, v9")
    for fb in range(2):
        if fb == 1: a("s_nop 7")
        for j in range(1, 4):
            for g in range(4):
                r = acc(j, fb) + 4 * g
                a(f"ds_write_b128 v2, v[{r}:{r+3}] offset:{(j-1)*8192 + (fb*4+g)*1024}")
    a("s_waitcnt lgkmcnt(0)", "s_barrier")
    for j in range(1, 4):
        for q in range(8):
            r = acc(j, 0) + 4 * q
            a(f"ds_read_b128 v[{r}:{r+3}], v{2+j} offset:{q*1024}")
    for j in range(1, 4):
        a(f"s_waitcnt lgkmcnt({min(15, 8*(3-j))})")
        for i in range(16):
            a(f"v_pk_add_f32 v[{ACC+2*i}:{ACC+2*i+1}], v[{ACC+2*i}:{ACC+2*i+1}], v[{ACC+32*j+2*i}:{ACC+32*j+2*i+1}]")
    for i in range(16): a(f"v_cvt_pk_bf16_f32 v{16+i}, v{ACC+2*i}, v{ACC+2*i+1}")
    a("s_nop 1")
    for q in range(4):
        for i in range(2): a(f"v_permlane32_swap_b32 v{16+4*q+i}, v{16+4*q+2+i}")
    a("s_nop 1")
    for q in range(4): a(f"buffer_store_dwordx4 v[{16+4*q}:{19+4*q}], v10, s[8:11], 0 offen offset:{32*q}")
    a("s_endpgm")

def gemm2_entry(a):
    a("s_load_dwordx2 s[4:5], s[0:1], 16", "s_load_dwordx2 s[6:7], s[0:1], 48", "s_load_dwordx2 s[28:29], s[0:1], 80",
      "s_load_dwordx2 s[34:35], s[0:1], 0", "s_load_dwordx2 s[40:41], s[0:1], 56", "s_load_dwordx2 s[42:43], s[0:1], 64",
      "s_and_b32 s3, s2, 7", "s_lshr_b32 s32, s2, 3",
      "s_lshr_b32 s31, s3, 1", "s_lshl_b32 s31, s31, 2", "s_and_b32 s36, s32, 3", "s_add_u32 s31, s31, s36",
      "s_and_b32 s30, s3, 1", "s_lshl_b32 s30, s30, 3", "s_lshr_b32 s36, s32, 2", "s_add_u32 s30, s30, s36")

def gen_gemm2():
    a = Asm()
    a("s_cmp_ge_u32 s2, 256", "s_cbranch_scc0 g2_go", "s_endpgm", "g2_go:")
    gemm2_entry(a)
    a("v_lshrrev_b32 v1, 6, v0", "s_nop 0", "v_readfirstlane_b32 s33, v1", "v_and_b32 v1, 63, v0", "s_waitcnt lgkmcnt(0)")
    gemm2_body(a)
    return a.text(), dict(vgpr=192 + 144, accum=192, grid=256, block=256, lds=98304)
```

```python
from common import *

def gen_ln():
    a = Asm()
    R, Fv = 4, 20
    T = 52
    a("s_cmp_ge_u32 s2, 256", "s_cbranch_scc1 ln_done",
      "s_load_dwordx2 s[4:5], s[0:1], 0", "s_load_dwordx2 s[6:7], s[0:1], 80",
      "v_lshrrev_b32 v1, 5, v0", "s_lshl_b32 s3, s2, 3", "v_add_u32 v1, s3, v1", "v_and_b32 v2, 31, v0",
      "v_lshlrev_b32 v3, 11, v1", "v_lshl_add_u32 v3, v2, 4, v3",
      "s_waitcnt lgkmcnt(0)")
    srd(a, 8, 4, 5, S * D * 2)
    for i in range(4):
        a(f"buffer_load_dwordx4 v[{R+4*i}:{R+4*i+3}], v3, s[8:11], 0 offen offset:{512*i}")
    srd(a, 12, 6, 7, 2 * S * D * 2, WS_XN)
    a("v_lshrrev_b32 v84, 5, v1", "v_lshlrev_b32 v84, 16, v84", "v_lshrrev_b32 v85, 1, v2", "v_lshl_add_u32 v84, v85, 10, v84",
      "v_and_b32 v85, 1, v2", "v_lshl_add_u32 v84, v85, 9, v84", "v_and_b32 v85, 31, v1", "v_lshl_add_u32 v84, v85, 4, v84",
      "s_mov_b32 s20, 0xffff0000", "s_mov_b32 s21, 0x3a800000", "s_mov_b32 s22, 0x3727c5ac")
    def unpack():
        for i in range(16):
            a(f"v_lshlrev_b32 v{Fv+2*i}, 16, v{R+i}", f"v_and_b32 v{Fv+2*i+1}, s20, v{R+i}")
    def reduce32(v, t):
        for r in (8, 4, 2, 1):
            a("s_nop 1", f"v_add_f32_dpp v{v}, v{v}, v{v} row_ror:{r} row_mask:0xf bank_mask:0xf")
        a(f"v_mov_b32 v{t}, v{v}", "s_nop 1", f"v_permlane16_swap_b32 v{t}, v{v}", "s_nop 1", f"v_add_f32 v{v}, v{v}, v{t}")
    def tree(src, n):
        a(*[f"v_pk_add_f32 v[{T+2*i}:{T+2*i+1}], v[{src+4*i}:{src+4*i+1}], v[{src+4*i+2}:{src+4*i+3}]" for i in range(n // 2)])
        m = n // 2
        while m > 1:
            a(*[f"v_pk_add_f32 v[{T+2*i}:{T+2*i+1}], v[{T+4*i}:{T+4*i+1}], v[{T+4*i+2}:{T+4*i+3}]" for i in range(m // 2)])
            m //= 2
        a(f"v_add_f32 v{T}, v{T}, v{T+1}")
    def bf(v):
        a(f"v_cvt_pk_bf16_f32 v{v}, v{v}, v{v}", f"v_lshlrev_b32 v{v}, 16, v{v}")
    def norm(out_soff):
        M, V = 86, 88
        unpack()
        tree(Fv, 16)
        reduce32(T, T + 1)
        a(f"v_mul_f32 v{M}, s21, v{T}", f"v_mov_b32 v{M+1}, v{M}")
        C = 90
        for i in range(16):
            a(f"v_pk_add_f32 v[{C+2*i}:{C+2*i+1}], v[{Fv+2*i}:{Fv+2*i+1}], v[{M}:{M+1}] neg_lo:[0,1] neg_hi:[0,1]")
        for i in range(16):
            a(f"v_pk_mul_f32 v[{C+2*i}:{C+2*i+1}], v[{C+2*i}:{C+2*i+1}], v[{C+2*i}:{C+2*i+1}]")
        tree(C, 16)
        reduce32(T, T + 1)
        a(f"v_mul_f32 v{V}, s21, v{T}")
        bf(V)
        a(f"v_add_f32 v{V}, s22, v{V}")
        bf(V)
        a(f"v_sqrt_f32 v{V}, v{V}", "s_nop 0")
        bf(V)
        a(f"v_rcp_f32 v{V}, v{V}")
        bf(M)
        a(f"v_mov_b32 v{M+1}, v{M}", f"v_mov_b32 v{V+1}, v{V}")
        for i in range(16):
            a(f"v_pk_add_f32 v[{Fv+2*i}:{Fv+2*i+1}], v[{Fv+2*i}:{Fv+2*i+1}], v[{M}:{M+1}] neg_lo:[0,1] neg_hi:[0,1]")
        for i in range(16):
            a(f"v_cvt_pk_bf16_f32 v{R+i}, v{Fv+2*i}, v{Fv+2*i+1}")
        unpack()
        for i in range(16):
            a(f"v_pk_mul_f32 v[{Fv+2*i}:{Fv+2*i+1}], v[{Fv+2*i}:{Fv+2*i+1}], v[{V}:{V+1}]")
        O = 124 if out_soff == 0 else R
        for i in range(16):
            a(f"v_cvt_pk_bf16_f32 v{O+i}, v{Fv+2*i}, v{Fv+2*i+1}")
        for i in range(4):
            a(f"s_mov_b32 s23, {hex(out_soff + 16384*i)}",
              f"buffer_store_dwordx4 v[{O+4*i}:{O+4*i+3}], v84, s[12:15], s23 offen")
        if O != R:
            for i in range(16):
                a(f"v_mov_b32 v{R+i}, v{O+i}")
    a("s_waitcnt vmcnt(0)")
    norm(0)
    norm(WS_Y - WS_XN)
    a("ln_done:", "s_endpgm")
    return a.text(), dict(vgpr=140, accum=140, grid=256, block=256, lds=0)
```

```python
import sys, os
sys.path.insert(0, os.path.dirname(__file__))
from common import *
from ln import gen_ln
from gemm1 import gen_gemm1
from attn import gen_attn
from gemm2 import gen_gemm2
NAME = "parallel_sum__softmax_full_mha__mixer_channel_mlp__prompt"
ROOT = os.path.join(os.path.dirname(os.path.abspath(__file__)), "..", "cdna_kernels")

def build(kernels, out):
    ref = open(os.path.join(ROOT, NAME + ".s.ref")).read().split("\n")
    head = [l for l in ref if l.startswith(";   offset") or l.startswith("; Kernarg")]
    txt, desc = [], []
    for name, (body, m) in kernels:
        head.append(f"; @launch kernel={name} grid=({m['grid']},1,1) block=({m['block']},1,1) lds={m['lds']}")
        txt.append(kernel_header(name) + body)
        desc.append(kernel_desc(name, m['vgpr'], m['accum']))
    s = "\n".join(head) + '\n.amdgcn_target "amdgcn-amd-amdhsa--gfx950"\n.text\n' + "".join(txt) + '.section .rodata,"a"\n' + "".join(desc)
    open(out, "w").write(s)
    print(out, len(s), "bytes")

if __name__ == "__main__":
    out = sys.argv[1] if len(sys.argv) > 1 else os.path.join(ROOT, NAME + ".s")
    build([("ln_kernel", gen_ln()), ("gemm1_kernel", gen_gemm1()), ("attn_kernel", gen_attn()), ("gemm2_kernel", gen_gemm2())], out)
```

```python
S, D, H, F = 2048, 1024, 32, 3584
import os
WSB = int(os.environ.get("WSB", "0"), 0)
WS_XN, WS_Y, WS_Q, WS_KV, WS_AF = [WSB + o for o in (0x0, 0x400000, 0x800000, 0xC00000, 0x1400000)]
def knob(n, d=""):
    v = os.environ.get(n, d)
    return " " + v if v else ""
AF_KS = 288
AF_TB = AF_KS * 1024
AF_BYTES = 64 * AF_TB
WS_FLAG = 0x2800000

class Asm:
    def __init__(self):
        self.L = []
    def __call__(self, *lines):
        for s in lines:
            for t in s.split("\n"):
                t = t.strip()
                if t:
                    self.L.append(t if t.endswith(":") else "    " + t)
    def text(self):
        return "\n".join(self.L) + "\n"

def srd(a, d, lo, hi, size, off=0):
    if off:
        a(f"s_add_u32 s{d}, s{lo}, {hex(off)}", f"s_addc_u32 s{d+1}, s{hi}, 0")
    else:
        a(f"s_mov_b32 s{d}, s{lo}", f"s_mov_b32 s{d+1}, s{hi}")
    a(f"s_mov_b32 s{d+2}, {hex(size)}", f"s_mov_b32 s{d+3}, 0x20000")

class VmSim:
    def __init__(self):
        self.n = 0
        self.pos = {}
    def issue(self, tag=None):
        self.n += 1
        if tag is not None:
            self.pos[tag] = self.n
    def need(self, tags):
        p = [self.pos[t] for t in tags if t in self.pos]
        if not p:
            return None
        return self.n - max(p)

def rolled_loop(sim, body, iters):
    texts, waits = [], {}
    for it in range(iters):
        t = []
        for x in body(it):
            if isinstance(x, str):
                t.append(x)
            elif x[0] == 'vm':
                sim.issue(x[1]); t.append(x[2])
            else:
                n = sim.need(x[2])
                if n is not None:
                    waits[x[1]] = min(waits.get(x[1], 63), n)
                t.append(('W', x[1], x[3]))
        texts.append(t)
    for t in texts[1:]:
        assert t == texts[0], "loop body differs between iterations"
    return [x if isinstance(x, str) else f"s_waitcnt vmcnt({waits.get(x[1], 63)}){x[2]}" for x in texts[0]]

def kernel_header(name):
    return f".globl {name}\n.p2align 8\n.type {name},@function\n{name}:\n"

def kernel_desc(name, vgpr, accum, sgpr=102):
    return (f".p2align 6\n.amdhsa_kernel {name}\n  .amdhsa_next_free_vgpr {vgpr}\n  .amdhsa_next_free_sgpr {sgpr}\n"
            f"  .amdhsa_accum_offset {accum}\n  .amdhsa_group_segment_fixed_size 0\n  .amdhsa_kernarg_size 88\n"
            f"  .amdhsa_user_sgpr_count 2\n  .amdhsa_user_sgpr_kernarg_segment_ptr 1\n"
            f"  .amdhsa_system_sgpr_workgroup_id_x 1\n.end_amdhsa_kernel\n")
```

```python
from common import *

QSCALE = 0x3e8293ee
GC0, GC1 = 0xc0135761, 0xbdd2d3e8

def role(a, name, NB, swapped, kind):
    NP = NB // 2
    SLOT = 64 * NB * 64
    ldb = 6144 if kind != 'h' else 7168
    nv = min(2 * NB, 14)
    vbase = 256 - 16 * nv
    def acc(nb, t):
        i = nb * 2 + t
        return ('v', vbase + 16 * i) if i < nv else ('a', 96 + 16 * (i - nv))
    def rng(p, n): return f"{p[0]}[{p[1]}:{p[1]+n-1}]"
    XR = lambda u, t: ('a', (u % 8) * 8 + 4 * t)
    WR = lambda nb: ('a', 64 + 4 * nb)
    a(f"{name}:")
    if kind == 'h':
        srd(a, 8, 6, 7, 1024 * ldb); srd(a, 20, 34, 35, F * 2)
    else:
        srd(a, 8, 4, 5, 1024 * ldb)
    xoff = WS_Y if kind == 'h' else WS_XN
    a("s_lshl_b32 s36, s31, 3", "s_lshl_b32 s37, s33, 1", "s_add_u32 s36, s36, s37",
      "s_lshl_b32 s37, s36, 16", f"s_add_u32 s37, s37, {hex(xoff)}",
      "s_add_u32 s12, s28, s37", "s_addc_u32 s13, s29, 0", "s_mov_b32 s14, 0x10000", "s_mov_b32 s15, 0x20000",
      "s_add_u32 s16, s12, 0x10000", "s_addc_u32 s17, s13, 0", "s_mov_b32 s18, 0x10000", "s_mov_b32 s19, 0x20000")
    sim = VmSim()
    if kind == 'h':
        a("v_lshrrev_b32 v6, 5, v1", "v_lshlrev_b32 v6, 3, v6", "s_lshl_b32 s37, s30, 1", "v_add_u32 v6, s37, v6")
        for nb in range(NB):
            for g in range(4):
                r = 8 + 8 * nb + 2 * g
                a(f"buffer_load_dwordx2 v[{r}:{r+1}], v6, s[20:23], 0 offen offset:{64*nb+16*g}"); sim.issue('bias')
    a("v_lshlrev_b32 v2, 4, v1",
      "v_lshrrev_b32 v3, 5, v1", "v_lshlrev_b32 v3, 2, v3", "v_bfe_u32 v4, v1, 2, 2", "v_add_u32 v3, v3, v4",
      "s_lshl_b32 s37, s33, 4", "v_add_u32 v3, s37, v3", f"v_mul_u32_u24 v3, {ldb}, v3",
      "v_bfe_u32 v4, v1, 4, 1", "v_lshl_add_u32 v3, v4, 6, v3", "v_and_b32 v4, 3, v1", "v_lshl_add_u32 v3, v4, 4, v3",
      "s_lshl_b32 s37, s30, 1", "v_add_u32 v3, s37, v3", f"v_add_u32 v4, {8*ldb}, v3",
      "v_lshrrev_b32 v5, 5, v1", f"v_mul_u32_u24 v5, {NP*1024}, v5", "v_bfe_u32 v7, v1, 2, 2", "v_lshl_add_u32 v5, v7, 6, v5",
      "v_bfe_u32 v7, v1, 4, 1", "v_lshl_add_u32 v5, v7, 5, v5", "v_and_b32 v7, 3, v1", "v_lshl_add_u32 v5, v7, 3, v5",
      f"v_add_u32 v7, {2*SLOT}, v5",
      f"s_mul_i32 s38, s33, {2*NP*1024}", "s_mov_b32 s24, 0", "s_mov_b32 s25, 0")
    def dma(stage, p):
        kpl, np_ = divmod(p, NP)
        m0 = (stage % 4) * SLOT + p * 1024 - np_ * 128
        return [f"s_add_u32 m0, s38, {m0}", "s_nop 0",
                ('vm', ('W', stage), f"buffer_load_dwordx4 v{3+kpl}, s[8:11], s24 offen offset:{np_*128}" + knob("G1_WF") + " lds")]
    def xld(u):
        return [('vm', ('X', u), f"buffer_load_dwordx4 {rng(XR(u,t),4)}, v2, s[{12+4*t}:{15+4*t}], s25 offen offset:{(u%4)*1024}") for t in range(2)]
    def wrd(u, nb):
        s, j = divmod(u, 4)
        sl = s % 4
        off = (sl % 2) * SLOT + (2 * j * NP + nb // 2) * 1024 + (nb % 2) * 256
        r = WR(nb)[1]
        v = 5 if sl < 2 else 7
        return [f"ds_read_b64_tr_b16 a[{r+2*i}:{r+2*i+1}], v{v} offset:{off+512*i}" for i in range(2)]
    NPC = 2 * NP
    first, second = list(range(NPC // 2)), list(range(NPC // 2, NPC))
    def emit(ops):
        for x in ops:
            if isinstance(x, str): a(x)
            else: sim.issue(x[1]); a(x[2])
    stepW, stepX = f"s_add_u32 s24, s24, {64*ldb}", "s_add_u32 s25, s25, 4096"
    for u in range(-9, 0):
        s, j = divmod(u, 4)
        if u + 7 >= 0:
            emit(xld(u + 7))
            if j == 0: a(stepX)
        if j == 3:
            for p in first: emit(dma(s + 3, p))
        if j == 0:
            for p in second: emit(dma(s + 2, p))
            a(stepW)
    if kind == 'h':
        a(f"s_waitcnt vmcnt({sim.need(['bias'])})", "s_mov_b32 s37, 0xffff0000")
        for nb in range(NB):
            for t in range(2):
                b = acc(nb, t)[1]
                for i in range(8):
                    r = 8 + 8 * nb + i
                    a(f"v_lshlrev_b32 v{b+2*i}, 16, v{r}", f"v_and_b32 v{b+2*i+1}, s37, v{r}")
    else:
        for nb in range(NB):
            for t in range(2):
                k, b = acc(nb, t)
                for i in range(16):
                    a(f"v_mov_b32 v{b+i}, 0" if k == 'v' else f"v_accvgpr_write_b32 a{b+i}, 0")
    a(f"s_waitcnt vmcnt({sim.need([('W', 0)])})", "s_barrier")
    for nb in range(NB): emit(wrd(0, nb))
    a(";MARK0", "s_mov_b32 s26, 0", f"{name}_loop:")
    def body(it):
        for u in range(16 * it, 16 * it + 16):
            s, j = divmod(u, 4)
            extra = [xld(u + 7) + ([stepX] if j == 0 else [])]
            if j == 3: extra += [dma(s + 3, p) for p in first]
            if j == 0: extra += [dma(s + 2, p) for p in second]; extra[-1] = extra[-1] + [stepW]
            yield ('wait', ('x', u % 16), [('X', u)], "")
            for nb in range(NB):
                yield f"s_waitcnt lgkmcnt({2*(NB-1)})"
                for t in range(2):
                    c, w, x = rng(acc(nb, t), 16), rng(WR(nb), 4), rng(XR(u, t), 4)
                    yield f"v_mfma_f32_32x32x16_bf16 {c}, {w}, {x}, {c}" if swapped else f"v_mfma_f32_32x32x16_bf16 {c}, {x}, {w}, {c}"
                if j == 3 and nb == 0:
                    yield ('wait', ('w', u % 16), [('W', s + 1)], "")
                    yield "s_barrier"
                yield from wrd(u + 1, nb)
                if 1 <= nb <= len(extra):
                    yield from extra[nb - 1]
            assert len(extra) <= NB - 1
    a(*rolled_loop(sim, body, 4))
    a("s_add_u32 s26, s26, 1", "s_cmp_lt_u32 s26, 4", f"s_cbranch_scc1 {name}_loop")
    a(";MARK1", "s_waitcnt vmcnt(0) lgkmcnt(0)", "s_nop 7", "s_nop 7")
    if kind == 'h':
        srd(a, 8, 28, 29, AF_BYTES, WS_AF)
        a(f"s_mul_i32 s37, s36, {AF_TB}", "s_lshl_b32 s39, s30, 6", "s_add_u32 s37, s37, s39", "s_add_u32 s37, s37, 0x10000")
        tstride, nbstride, o0 = AF_TB, 2048, 0
        for i, c in enumerate((GC0, GC0, GC1, GC1, 0x3f800000, 0x3f800000)):
            a(f"v_mov_b32 v{8+i}, {hex(c)}")
    elif kind == 'q':
        srd(a, 8, 28, 29, S * D * 2, WS_Q)
        a("s_lshl_b32 s37, s36, 11", "s_lshl_b32 s39, s30, 12", "s_add_u32 s37, s37, s39")
        tstride, nbstride, o0 = 2048, 64 * 2048, 0
        a(f"v_mov_b32 v8, {hex(QSCALE)}", f"v_mov_b32 v9, {hex(QSCALE)}")
    else:
        srd(a, 8, 28, 29, 2 * S * D * 2, WS_KV)
        a("s_lshl_b32 s37, s36, 12", "s_and_b32 s39, s30, 1023", "s_lshl_b32 s39, s39, 13", "s_add_u32 s37, s37, s39")
        tstride, nbstride, o0 = 4096, 64 * 4096, (2048 if kind == 'v' else 0)
    blk = 0
    for nb in range(NB):
        for t in range(2):
            k, b = acc(nb, t)
            if k == 'a':
                dst = vbase + 16 * (blk % 2)
                for i in range(16): a(f"v_accvgpr_read_b32 v{dst+i}, a{b+i}")
                b = dst
            P = 16 + 8 * (blk % 2)
            pr = lambda r: f"v[{r}:{r+1}]"
            if kind == 'h':
                T, E = 32, 48
                for i in range(8): a(f"v_pk_mul_f32 {pr(T+2*i)}, {pr(b+2*i)}, {pr(b+2*i)}")
                for i in range(8): a(f"v_pk_fma_f32 {pr(T+2*i)}, {pr(T+2*i)}, v[10:11], v[8:9]")
                for i in range(8): a(f"v_pk_mul_f32 {pr(T+2*i)}, {pr(T+2*i)}, {pr(b+2*i)}")
                for i in range(16): a(f"v_exp_f32 v{E+i}, v{T+i}")
                for i in range(8): a(f"v_pk_add_f32 {pr(E+2*i)}, {pr(E+2*i)}, v[12:13]")
                for i in range(16): a(f"v_rcp_f32 v{T+i}, v{E+i}")
                for i in range(8): a(f"v_pk_mul_f32 {pr(b+2*i)}, {pr(b+2*i)}, {pr(T+2*i)}")
            elif kind == 'q':
                for i in range(8): a(f"v_pk_mul_f32 {pr(b+2*i)}, {pr(b+2*i)}, v[8:9]")
            for i in range(8): a(f"v_cvt_pk_bf16_f32 v{P+i}, v{b+2*i}, v{b+2*i+1}")
            a(f"s_add_u32 s39, s37, {nb*nbstride + t*tstride}")
            for e in range(2):
                a(f"buffer_store_dwordx4 v[{P+4*e}:{P+4*e+3}], v2, s[8:11], s39 offen offset:{o0+1024*e}" + knob("G1_ST"))
            blk += 1
    a(";MARK2", "s_endpgm")

def gen_gemm1():
    a = Asm()
    a("s_cmp_ge_u32 s2, 256", "s_cbranch_scc1 g1_done",
      "s_load_dwordx2 s[4:5], s[0:1], 8", "s_load_dwordx2 s[6:7], s[0:1], 32", "s_load_dwordx2 s[34:35], s[0:1], 40",
      "s_load_dwordx2 s[28:29], s[0:1], 80",
      "v_lshrrev_b32 v1, 6, v0", "s_and_b32 s3, s2, 7", "v_readfirstlane_b32 s33, v1", "v_and_b32 v1, 63, v0",
      "s_lshr_b32 s31, s2, 3", "s_lshr_b32 s32, s31, 3", "s_lshl_b32 s3, s3, 2", "s_add_u32 s32, s32, s3", "s_and_b32 s31, s31, 7",
      "s_cmp_ge_u32 s32, 31", "s_cbranch_scc1 g1_done",
      "s_waitcnt lgkmcnt(0)",
      "s_cmp_ge_u32 s32, 12", "s_cbranch_scc1 g1_selh",
      "s_lshl_b32 s30, s32, 8",
      "s_cmp_ge_u32 s32, 8", "s_cbranch_scc1 g1_jv",
      "s_cmp_ge_u32 s32, 4", "s_cbranch_scc1 g1_jk",
      "s_branch g1_q",
      "g1_jk:", "s_branch g1_k", "g1_jv:", "s_branch g1_v",
      "g1_done:", "s_endpgm",
      "g1_selh:", "s_sub_u32 s30, s32, 12", "s_mul_i32 s30, s30, 192", f"s_min_u32 s30, s30, {F-192}")
    role(a, "g1_h", 6, True, 'h')
    role(a, "g1_q", 8, True, 'q')
    role(a, "g1_k", 8, True, 'k')
    role(a, "g1_v", 8, False, 'v')
    return a.text(), dict(vgpr=384, accum=256, grid=256, block=256, lds=131072)
```

```python
import os
from common import *
NOW, NOX = os.environ.get("G2_NOW"), os.environ.get("G2_NOX")
WF, XF = knob("G2_WF"), knob("G2_XF")

def gemm2_body(a, XD=8, ACC=64, pfx="g2", lds_base=0):
    WD = 8
    acc = lambda j, fb: ACC + 32 * j + 16 * fb
    XR = lambda u, j: (u % XD) * 16 + 4 * j
    WR = lambda u, fb: 16 * XD + 8 * (u % 2) + 4 * fb
    sim = VmSim()
    srd(a, 8, 6, 7, F * D * 2)
    srd(a, 12, 28, 29, AF_BYTES, WS_AF)
    srd(a, 16, 34, 35, S * D * 2)
    srd(a, 20, 40, 41, D * 2)
    a("v_lshlrev_b32 v9, 4, v1", "s_lshl_b32 s36, s31, 2")
    for j in range(4):
        a(f"s_add_u32 s37, s33, {j}", "s_and_b32 s37, s37, 3", "s_add_u32 s37, s37, s36", f"s_mul_i32 s37, s37, {AF_TB}",
          f"v_add_u32 v{2+j}, s37, v9")
    a("v_lshrrev_b32 v6, 5, v1", "v_lshlrev_b32 v6, 2, v6", "v_bfe_u32 v7, v1, 2, 2", "v_add_u32 v6, v6, v7", "v_lshlrev_b32 v6, 11, v6",
      "v_bfe_u32 v7, v1, 4, 1", "v_lshl_add_u32 v6, v7, 6, v6", "v_and_b32 v7, 3, v1", "v_lshl_add_u32 v6, v7, 4, v6",
      "s_lshl_b32 s37, s30, 7", "v_add_u32 v6, s37, v6", f"v_add_u32 v7, {16384-1024}, v6",
      f"s_mul_i32 s38, s33, 24576", f"s_add_u32 s38, s38, {lds_base}",
      "v_lshrrev_b32 v8, 5, v1", "v_lshlrev_b32 v8, 9, v8", "v_bfe_u32 v10, v1, 2, 2", "v_lshl_add_u32 v8, v10, 6, v8",
      "v_bfe_u32 v10, v1, 4, 1", "v_lshl_add_u32 v8, v10, 5, v8", "v_and_b32 v10, 3, v1", "v_lshl_add_u32 v8, v10, 3, v8",
      "v_add_u32 v8, s38, v8",
      f"s_mul_i32 s24, s33, {896*2048}", f"s_mul_i32 s25, s33, {56*1024}", f"s_add_u32 s25, s25, {64*1024}",
      "s_lshl_b32 s44, s33, 19", "s_lshl_b32 s45, s33, 14")
    def dma(u):
        if NOW and u > 0: return [[], []]
        return [[f"s_add_u32 m0, s38, {(u % WD) * 2048}", "s_nop 0", ('vm', ('W', u), "buffer_load_dwordx4 v6, s[8:11], s24 offen" + WF + " lds")],
                [('vm', ('W', u), "buffer_load_dwordx4 v7, s[8:11], s24 offen offset:1024" + WF + " lds"), "s_add_u32 s24, s24, 0x8000"]]
    def xld(u):
        o = [[('vm', ('X', u), f"buffer_load_dwordx4 a[{XR(u,j)}:{XR(u,j)+3}], v{2+j}, s[12:15], s25 offen offset:{(u%4)*1024}" + XF)] for j in range(4)]
        if NOX and u > 0: o = [[], [], [], []]
        if u % 4 == 3: o[3].append("s_add_u32 s25, s25, 4096")
        return o
    def wrd(u, fb):
        r = WR(u, fb)
        return [f"ds_read_b64_tr_b16 a[{r+2*i}:{r+2*i+1}], v8 offset:{(u%WD)*2048+1024*i+256*fb}" for i in range(2)]
    def emit(ops):
        for x in ops:
            if isinstance(x, str): a(x)
            elif x[0] == 'vm': sim.issue(x[1]); a(x[2])
            else:
                n = sim.need(x[2])
                if n is None: n = 63
                a(f"s_waitcnt vmcnt({min(n, 63)}){x[3]}")
    for u in range(-(WD - 1), 0):
        for x in dma(u + WD - 1): emit(x)
        if u + XD - 1 >= 0:
            for x in xld(u + XD - 1): emit(x)
        if u == -(WD - 1):
            a("s_lshl_b32 s37, s36, 5", "s_lshl_b32 s39, s33, 5", "s_add_u32 s37, s37, s39", "v_and_b32 v10, 31, v1", "v_add_u32 v10, s37, v10",
              "v_lshlrev_b32 v10, 11, v10", "v_lshrrev_b32 v11, 5, v1", "v_lshlrev_b32 v11, 4, v11", "s_lshl_b32 s37, s30, 7",
              "v_add_u32 v11, s37, v11", "v_add_u32 v10, v10, v11")
            for q in range(4):
                emit([('vm', 'res', f"buffer_load_dwordx4 v[{16+4*q}:{19+4*q}], v10, s[16:19], 0 offen offset:{32*q}"),
                      ('vm', 'res', f"buffer_load_dwordx4 v[{32+4*q}:{35+4*q}], v11, s[20:23], 0 offen offset:{32*q}")])
    for i in range(32, 128): a(f"v_mov_b32 v{ACC+i}, 0")
    emit([('wait', 0, ['res'], "")])
    a("s_mov_b32 s37, 0xffff0000")
    for q in range(4):
        d = ACC + 8 * q
        for i in range(4):
            a(f"v_lshlrev_b32 v{d+2*i}, 16, v{16+4*q+i}", f"v_and_b32 v{d+2*i+1}, s37, v{16+4*q+i}",
              f"v_lshlrev_b32 v12, 16, v{32+4*q+i}", f"v_and_b32 v13, s37, v{32+4*q+i}",
              f"v_add_f32 v{d+2*i}, v{d+2*i}, v12", f"v_add_f32 v{d+2*i+1}, v{d+2*i+1}, v13")
    a("s_nop 1")
    for q in range(4):
        for i in range(4): a(f"v_permlane32_swap_b32 v{ACC+8*q+i}, v{ACC+8*q+4+i}")
    emit([('wait', 0, [('W', 0)], "")])
    emit(wrd(0, 0) + wrd(0, 1))
    def step(u, last):
        ex = [[] for _ in range(8)]
        if u + WD - 1 < last:
            if (u + WD - 1) % 8 == 0:
                ex[0] += ["s_cmp_eq_u32 s26, 6", "s_cselect_b32 s8, s4, s8", "s_cselect_b32 s9, s5, s9",
                          f"s_cselect_b32 s10, {D*D*2}, s10", "s_cselect_b32 s24, s44, s24"]
            d = dma(u + WD - 1); ex[0] += d[0]; ex[1] += d[1]
        if u + 1 < last:
            ex[2] += [('wait', ('w', u % 8), [('W', u + 1)], "")] + wrd(u + 1, 0); ex[3] += wrd(u + 1, 1)
        if u + XD - 1 < last:
            if (u + XD - 1) % 8 == 0: ex[4] += ["s_cmp_eq_u32 s26, 6", "s_cselect_b32 s25, s45, s25"]
            for j, x in enumerate(xld(u + XD - 1)): ex[4 + j] += x
        yield ('wait', ('x', u % 8), [('X', u)], " lgkmcnt(0)")
        for fb in range(2):
            for j in range(4):
                c = f"v[{acc(j,fb)}:{acc(j,fb)+15}]"
                yield f"v_mfma_f32_32x32x16_bf16 {c}, a[{WR(u,fb)}:{WR(u,fb)+3}], a[{XR(u,j)}:{XR(u,j)+3}], {c}"
                yield from ex[4 * fb + j]
    def body(it):
        for u in range(8 * it, 8 * it + 8): yield from step(u, 1000)
    a(";MARK0", "s_mov_b32 s26, 0", f"{pfx}_loop:")
    a(*rolled_loop(sim, body, 8))
    a("s_add_u32 s26, s26, 1", "s_cmp_lt_u32 s26, 8", f"s_cbranch_scc1 {pfx}_loop")
    for u in range(64, 72): emit(step(u, 72))
    a(";MARK1")
    srd(a, 8, 42, 43, S * D * 2)
    a("v_add_u32 v2, s38, v9")
    for j in range(1, 4):
        a(f"s_sub_u32 s37, s33, {j}", "s_and_b32 s37, s37, 3", "s_mul_i32 s37, s37, 24576", f"s_add_u32 s37, s37, {lds_base + (j-1)*8192}",
          f"v_add_u32 v{2+j}, s37, v9")
    for fb in range(2):
        if fb == 1: a("s_nop 7")
        for j in range(1, 4):
            for g in range(4):
                r = acc(j, fb) + 4 * g
                a(f"ds_write_b128 v2, v[{r}:{r+3}] offset:{(j-1)*8192 + (fb*4+g)*1024}")
    a("s_waitcnt lgkmcnt(0)", "s_barrier", ";MARK2")
    for j in range(1, 4):
        for q in range(8):
            r = acc(j, 0) + 4 * q
            a(f"ds_read_b128 v[{r}:{r+3}], v{2+j} offset:{q*1024}")
    for j in range(1, 4):
        a(f"s_waitcnt lgkmcnt({min(15, 8*(3-j))})")
        for i in range(16):
            a(f"v_pk_add_f32 v[{ACC+2*i}:{ACC+2*i+1}], v[{ACC+2*i}:{ACC+2*i+1}], v[{ACC+32*j+2*i}:{ACC+32*j+2*i+1}]")
    for i in range(16): a(f"v_cvt_pk_bf16_f32 v{16+i}, v{ACC+2*i}, v{ACC+2*i+1}")
    a("s_nop 1")
    for q in range(4):
        for i in range(2): a(f"v_permlane32_swap_b32 v{16+4*q+i}, v{16+4*q+2+i}")
    a("s_nop 1")
    for q in range(4): a(f"buffer_store_dwordx4 v[{16+4*q}:{19+4*q}], v10, s[8:11], 0 offen offset:{32*q}" + knob("G2_ST"))
    a("s_endpgm")

def gemm2_entry(a):
    a("s_load_dwordx2 s[4:5], s[0:1], 16", "s_load_dwordx2 s[6:7], s[0:1], 48", "s_load_dwordx2 s[28:29], s[0:1], 80",
      "s_load_dwordx2 s[34:35], s[0:1], 0", "s_load_dwordx2 s[40:41], s[0:1], 56", "s_load_dwordx2 s[42:43], s[0:1], 64",
      "s_and_b32 s3, s2, 7", "s_lshr_b32 s32, s2, 3",
      "s_lshr_b32 s31, s3, 1", "s_lshl_b32 s31, s31, 2", "s_and_b32 s36, s32, 3", "s_add_u32 s31, s31, s36",
      "s_and_b32 s30, s3, 1", "s_lshl_b32 s30, s30, 3", "s_lshr_b32 s36, s32, 2", "s_add_u32 s30, s30, s36")

def gen_gemm2():
    a = Asm()
    a("s_cmp_ge_u32 s2, 256", "s_cbranch_scc0 g2_go", "s_endpgm", "g2_go:")
    gemm2_entry(a)
    a("v_lshrrev_b32 v1, 6, v0", "s_nop 0", "v_readfirstlane_b32 s33, v1", "v_and_b32 v1, 63, v0", "s_waitcnt lgkmcnt(0)")
    gemm2_body(a)
    return a.text(), dict(vgpr=192 + 144, accum=192, grid=256, block=256, lds=98304)
```

```python
import re
WS_DBG = 0x3000000
def instrument(body, kidx, marks=True):
    pre = ("    s_memtime s[80:81]\n    s_memrealtime s[82:83]\n    s_load_dwordx2 s[84:85], s[0:1], 80\n    s_mov_b32 s94, s2\n"
           "    s_mov_b32 s96, 0\n    s_mov_b32 s97, 0\n    s_mov_b32 s98, 0\n    s_mov_b32 s99, 0\n    v_mov_b32 v127, v0\n    s_waitcnt lgkmcnt(0)\n")
    post = ("    s_waitcnt vmcnt(0)\n    s_memtime s[86:87]\n    s_memrealtime s[88:89]\n    s_waitcnt lgkmcnt(0)\n"
            "    s_sub_u32 s86, s86, s80\n"
            f"    s_add_u32 s84, s84, {hex(WS_DBG + kidx * 0x10000)}\n    s_addc_u32 s85, s85, 0\n"
            "    s_mov_b32 s90, s86\n    s_mov_b32 s86, 0x10000\n    s_mov_b32 s87, 0x20000\n"
            "    v_mov_b32 v0, s82\n    v_mov_b32 v1, s88\n    v_mov_b32 v2, s90\n    v_mov_b32 v3, s96\n"
            "    v_mov_b32 v4, s97\n    v_mov_b32 v5, s98\n    v_mov_b32 v6, s99\n    v_mov_b32 v7, s33\n"
            "    s_lshl_b32 s94, s94, 3\n    s_and_b32 s95, s33, 7\n    s_add_u32 s94, s94, s95\n    s_lshl_b32 s94, s94, 5\n    v_mov_b32 v8, s94\n"
            "    s_mov_b64 exec, 1\n    s_nop 4\n"
            "    buffer_store_dwordx4 v[0:3], v8, s[84:87], 0 offen\n    buffer_store_dwordx4 v[4:7], v8, s[84:87], 0 offen offset:16\n"
            "    s_endpgm\n")
    body = re.sub(r";MARK(\d)", lambda m: f"s_memtime s[92:93]\n    s_waitcnt lgkmcnt(0)\n    s_sub_u32 s{96+int(m.group(1))}, s92, s80", body)
    return pre.replace("    v_mov_b32 v127, v0\n", "") + body.replace("    s_endpgm\n", post)
```

```python
from common import *

def gen_ln():
    a = Asm()
    R, Fv = 4, 20
    T = 52
    a("v_lshrrev_b32 v1, 6, v0", "s_nop 0", "v_readfirstlane_b32 s33, v1", "s_cmp_ge_u32 s2, 256", "s_cbranch_scc1 ln_done",
      "s_load_dwordx2 s[4:5], s[0:1], 0", "s_load_dwordx2 s[6:7], s[0:1], 80",
      "v_lshrrev_b32 v1, 5, v0", "s_lshl_b32 s3, s2, 3", "v_add_u32 v1, s3, v1", "v_and_b32 v2, 31, v0",
      "v_lshlrev_b32 v3, 11, v1", "v_lshl_add_u32 v3, v2, 4, v3",
      "s_waitcnt lgkmcnt(0)")
    srd(a, 8, 4, 5, S * D * 2)
    for i in range(4):
        a(f"buffer_load_dwordx4 v[{R+4*i}:{R+4*i+3}], v3, s[8:11], 0 offen offset:{512*i}" + knob("LN_LD"))
    srd(a, 12, 6, 7, 2 * S * D * 2, WS_XN)
    a("v_lshrrev_b32 v84, 5, v1", "v_lshlrev_b32 v84, 16, v84", "v_lshrrev_b32 v85, 1, v2", "v_lshl_add_u32 v84, v85, 10, v84",
      "v_and_b32 v85, 1, v2", "v_lshl_add_u32 v84, v85, 9, v84", "v_and_b32 v85, 31, v1", "v_lshl_add_u32 v84, v85, 4, v84",
      "s_mov_b32 s20, 0xffff0000", "s_mov_b32 s21, 0x3a800000", "s_mov_b32 s22, 0x3727c5ac")
    def unpack():
        for i in range(16):
            a(f"v_lshlrev_b32 v{Fv+2*i}, 16, v{R+i}", f"v_and_b32 v{Fv+2*i+1}, s20, v{R+i}")
    def reduce32(v, t):
        for r in (8, 4, 2, 1):
            a("s_nop 1", f"v_add_f32_dpp v{v}, v{v}, v{v} row_ror:{r} row_mask:0xf bank_mask:0xf")
        a(f"v_mov_b32 v{t}, v{v}", "s_nop 1", f"v_permlane16_swap_b32 v{t}, v{v}", "s_nop 1", f"v_add_f32 v{v}, v{v}, v{t}")
    def tree(src, n):
        a(*[f"v_pk_add_f32 v[{T+2*i}:{T+2*i+1}], v[{src+4*i}:{src+4*i+1}], v[{src+4*i+2}:{src+4*i+3}]" for i in range(n // 2)])
        m = n // 2
        while m > 1:
            a(*[f"v_pk_add_f32 v[{T+2*i}:{T+2*i+1}], v[{T+4*i}:{T+4*i+1}], v[{T+4*i+2}:{T+4*i+3}]" for i in range(m // 2)])
            m //= 2
        a(f"v_add_f32 v{T}, v{T}, v{T+1}")
    def bf(v):
        a(f"v_cvt_pk_bf16_f32 v{v}, v{v}, v{v}", f"v_lshlrev_b32 v{v}, 16, v{v}")
    def norm(out_soff):
        M, V = 86, 88
        unpack()
        tree(Fv, 16)
        reduce32(T, T + 1)
        a(f"v_mul_f32 v{M}, s21, v{T}", f"v_mov_b32 v{M+1}, v{M}")
        C = 90
        for i in range(16):
            a(f"v_pk_add_f32 v[{C+2*i}:{C+2*i+1}], v[{Fv+2*i}:{Fv+2*i+1}], v[{M}:{M+1}] neg_lo:[0,1] neg_hi:[0,1]")
        for i in range(16):
            a(f"v_pk_mul_f32 v[{C+2*i}:{C+2*i+1}], v[{C+2*i}:{C+2*i+1}], v[{C+2*i}:{C+2*i+1}]")
        tree(C, 16)
        reduce32(T, T + 1)
        a(f"v_mul_f32 v{V}, s21, v{T}")
        bf(V)
        a(f"v_add_f32 v{V}, s22, v{V}")
        bf(V)
        a(f"v_sqrt_f32 v{V}, v{V}", "s_nop 0")
        bf(V)
        a(f"v_rcp_f32 v{V}, v{V}")
        bf(M)
        a(f"v_mov_b32 v{M+1}, v{M}", f"v_mov_b32 v{V+1}, v{V}")
        for i in range(16):
            a(f"v_pk_add_f32 v[{Fv+2*i}:{Fv+2*i+1}], v[{Fv+2*i}:{Fv+2*i+1}], v[{M}:{M+1}] neg_lo:[0,1] neg_hi:[0,1]")
        for i in range(16):
            a(f"v_cvt_pk_bf16_f32 v{R+i}, v{Fv+2*i}, v{Fv+2*i+1}")
        unpack()
        for i in range(16):
            a(f"v_pk_mul_f32 v[{Fv+2*i}:{Fv+2*i+1}], v[{Fv+2*i}:{Fv+2*i+1}], v[{V}:{V+1}]")
        O = 124 if out_soff == 0 else R
        for i in range(16):
            a(f"v_cvt_pk_bf16_f32 v{O+i}, v{Fv+2*i}, v{Fv+2*i+1}")
        for i in range(4):
            a(f"s_mov_b32 s23, {hex(out_soff + 16384*i)}",
              f"buffer_store_dwordx4 v[{O+4*i}:{O+4*i+3}], v84, s[12:15], s23 offen" + knob("LN_ST"))
        if O != R:
            for i in range(16):
                a(f"v_mov_b32 v{R+i}, v{O+i}")
    srd(a, 16, 6, 7, 8192, WS_FLAG)
    a("s_lshl_b32 s3, s2, 10", "v_lshlrev_b32 v85, 2, v0", "v_mov_b32 v86, 0", "buffer_store_dword v86, v85, s[16:19], s3 offen")
    a("s_waitcnt vmcnt(1)", ";MARK0")
    norm(0)
    a(";MARK1")
    norm(WS_Y - WS_XN)
    a("ln_done:", "s_endpgm")
    return a.text(), dict(vgpr=140, accum=140, grid=256, block=256, lds=0)
```

```python
import sys, os
sys.path.insert(0, os.path.dirname(__file__))
from common import *
from ln import gen_ln
from gemm1 import gen_gemm1
from attn import gen_attn
from gemm2 import gen_gemm2
from instr import instrument
NAME = "parallel_sum__softmax_full_mha__mixer_channel_mlp__prompt"
ROOT = os.path.join(os.path.dirname(os.path.abspath(__file__)), "..", "cdna_kernels")

def build(kernels, out):
    ref = open(os.path.join(ROOT, NAME + ".s.ref")).read().split("\n")
    head = [l for l in ref if l.startswith(";   offset") or l.startswith("; Kernarg")]
    txt, desc = [], []
    for i, (name, (body, m)) in enumerate(kernels):
        if os.environ.get("INSTR"): body = instrument(body, i)
        else: body = "".join(l for l in body.splitlines(True) if ";MARK" not in l)
        head.append(f"; @launch kernel={name} grid=({m['grid']},1,1) block=({m['block']},1,1) lds={m['lds']}")
        if name in os.environ.get("DUP", "").split(","): head.append(head[-1])
        txt.append(kernel_header(name) + body)
        desc.append(kernel_desc(name, m['vgpr'], m['accum']))
    s = "\n".join(head) + '\n.amdgcn_target "amdgcn-amd-amdhsa--gfx950"\n.text\n' + "".join(txt) + '.section .rodata,"a"\n' + "".join(desc)
    open(out, "w").write(s)
    print(out, len(s), "bytes")

if __name__ == "__main__":
    out = sys.argv[1] if len(sys.argv) > 1 else os.path.join(ROOT, NAME + ".s")
    build([("ln_kernel", gen_ln()), ("gemm1_kernel", gen_gemm1()), ("attn_kernel", gen_attn()), ("gemm2_kernel", gen_gemm2())], out)
```

```python
from common import *

Q = lambda qb, e: 16 + 8 * qb + 4 * e
CN = lambda qb: 32 + 16 * qb
SS = lambda qb: 64 + 16 * qb
PP = lambda qb: 96 + 8 * qb
OO = lambda qb: 112 + 16 * qb
LL = lambda qb: 144 + 4 * qb
KB = lambda t, e: 152 + 8 * (t % 2) + 4 * e
VB = lambda t, e: 168 + 8 * (t % 2) + 4 * e
SEL = 184
r4 = lambda b: f"v[{b}:{b+3}]"
r16 = lambda b: f"v[{b}:{b+15}]"
def mf32(d, x, y, c): return f"v_mfma_f32_32x32x16_bf16 {r16(d)}, {r4(x)}, {r4(y)}, {c if isinstance(c, str) else r16(c)}"
def mf16(d, x, y): return f"v_mfma_f32_16x16x32_bf16 {r4(d)}, {r4(x)}, {r4(y)}, {r4(d)}"

def softmax_ops(qb):
    s, p = SS(qb), PP(qb)
    e = [f"v_exp_f32 v{s+i}, v{s+i}" for i in range(16)]
    c = [f"v_cvt_pk_bf16_f32 v{p+i}, v{s+2*i}, v{s+2*i+1}" for i in range(8)]
    out = e[0:3]
    for i in range(6):
        out += [e[3+2*i], c[i], e[4+2*i]]
    out += [e[15], c[6], c[7]]
    return out

def rowmax(a, qb, dst, first):
    s = SS(qb)
    if first:
        a(f"v_max3_f32 v{dst}, v{s}, v{s+1}, v{s+2}"); rest = list(range(3, 16))
    else:
        rest = list(range(16))
    while len(rest) >= 2:
        a(f"v_max3_f32 v{dst}, v{dst}, v{s+rest[0]}, v{s+rest[1]}"); rest = rest[2:]
    if rest: a(f"v_max_f32 v{dst}, v{dst}, v{s+rest[0]}")

def set_cneg(a):
    for qb in range(2):
        m = 4 + qb
        a(f"v_mov_b32 v6, v{m}", "s_nop 1", f"v_permlane32_swap_b32 v6, v{m}", "s_nop 1", f"v_max_f32 v{m}, v{m}, v6",
          f"v_sub_f32 v{m}, 0, v{m}")
        for i in range(16): a(f"v_mov_b32 v{CN(qb)+i}, v{m}")

def zero_state(a):
    for qb in range(2):
        for i in range(16): a(f"v_mov_b32 v{OO(qb)+i}, 0")
        for i in range(4): a(f"v_mov_b32 v{LL(qb)+i}, 0")

def prefetch_w2(a, sim, vt=188, gid="s2"):
    a("s_load_dwordx2 s[44:45], s[0:1], 48", "s_load_dwordx2 s[48:49], s[0:1], 16",
      f"s_lshl_b32 s37, {gid}, 2", "s_add_u32 s37, s37, s33", "s_mul_i32 s39, s37, 7168", "s_lshl_b32 s37, s37, 11",
      f"v_lshlrev_b32 v{vt}, 7, v1", f"v_and_b32 v{vt+1}, 0x7ff, v{vt}",
      f"s_mov_b32 s46, {F*D*2}", "s_mov_b32 s47, 0x20000", f"s_mov_b32 s50, {D*D*2}", "s_mov_b32 s51, 0x20000", "s_waitcnt lgkmcnt(0)",
      f"buffer_load_dword v{vt+2}, v{vt}, s[44:47], s39 offen", f"buffer_load_dword v{vt+3}, v{vt+1}, s[48:51], s37 offen")
    sim.issue(); sim.issue()

def attn_body(a, lds_base=0, after_store=None, pfx="at", prefetch=None, cnt=None):
    sim = VmSim()
    a("s_lshl_b32 s36, s31, 3", "s_lshl_b32 s37, s33, 1", "s_add_u32 s36, s36, s37",
      "s_lshl_b32 s37, s30, 17", "s_lshl_b32 s38, s36, 11", "s_add_u32 s37, s37, s38", f"s_add_u32 s37, s37, {hex(WS_Q)}",
      "s_add_u32 s8, s28, s37", "s_addc_u32 s9, s29, 0", "s_mov_b32 s10, 4096", "s_mov_b32 s11, 0x20000",
      "s_lshl_b32 s37, s30, 18", f"s_add_u32 s37, s37, {hex(WS_KV)}",
      "s_add_u32 s12, s28, s37", "s_addc_u32 s13, s29, 0", "s_mov_b32 s14, 0x40000", "s_mov_b32 s15, 0x20000",
      "v_lshlrev_b32 v2, 4, v1")
    for qb in range(2):
        for e in range(2):
            a(f"buffer_load_dwordx4 {r4(Q(qb,e))}, v2, s[8:11], 0 offen offset:{2048*qb+1024*e}"); sim.issue('q')
    for e in range(2):
        a(f"buffer_load_dwordx4 {r4(KB(0,e))}, v2, s[12:15], 0 offen offset:{1024*e}"); sim.issue('q')
    a("s_lshl_b32 s38, s33, 13", "s_add_u32 s24, s38, 2048", f"s_add_u32 s25, s38, {lds_base}")
    def dma(c, p):
        pre = [f"s_add_u32 m0, s25, {4096*(p//4)}", f"s_add_u32 s39, s24, {4096*(p//4)}"] if p % 4 == 0 else []
        return pre + [('vm', ('C', c), f"buffer_load_dwordx4 v2, s[12:15], s39 offen offset:{1024*(p%4)} lds")]
    step = ["s_add_u32 s24, s24, 0x8000", "s_xor_b32 s25, s25, 0x8000"]
    def emit(ops):
        for x in ops:
            if isinstance(x, str): a(x)
            else: sim.issue(x[1]); a(x[2])
    for c in range(2 if cnt is None else 1):
        for p in range(8): emit(dma(c, p))
        a(*step)
    if cnt is not None:
        a(f"v_mov_b32 v8, {cnt}", "v_mov_b32 v10, 1", "v_mov_b32 v4, 0", "v_mov_b32 v5, 0", "ds_write_b64 v8, v[4:5]",
          "s_mov_b32 s42, 4", "s_mov_b32 s43, 0")
    def arrive(o): return ["s_mov_b64 exec, 1", f"ds_add_u32 v8, v10 offset:{o}", "s_mov_b64 exec, -1"]
    def poll(o): return [f"ds_read_b32 v9, v8 offset:{o}"]
    def check(o, sreg, lab):
        return ["v_readfirstlane_b32 s37, v9", f"s_cmp_ge_u32 s37, {sreg}", f"s_cbranch_scc1 {lab}_ok", f"{lab}_spin:",
                f"ds_read_b32 v9, v8 offset:{o}", "s_waitcnt lgkmcnt(0)", "v_readfirstlane_b32 s37, v9", f"s_cmp_ge_u32 s37, {sreg}",
                f"s_cbranch_scc0 {lab}_spin", f"{lab}_ok:", f"s_add_u32 {sreg}, {sreg}, 4"]
    if prefetch: prefetch(a, sim)
    a("v_and_b32 v4, 3, v1", "v_bfe_u32 v5, v1, 2, 1", "v_bfe_u32 v6, v1, 4, 1", "v_xor_b32 v5, v5, v6", "v_or_b32 v4, v4, v5",
      "v_cmp_eq_u32 vcc, 0, v4", "v_mov_b32 v5, 0x3f803f80", "s_nop 0", f"v_cndmask_b32 v{SEL}, 0, v5, vcc")
    for i in range(1, 4): a(f"v_mov_b32 v{SEL+i}, v{SEL}")
    zero_state(a)
    for i in range(8): a(f"v_mov_b32 v{PP(1)+i}, 0", f"v_mov_b32 v{VB(1,0)+i}, 0")
    a(f"v_add_u32 v3, {lds_base}, v2" if lds_base else "v_mov_b32 v3, v2")
    a(f"s_waitcnt vmcnt({sim.need(['q'])})")
    for qb in range(2):
        a(mf32(SS(qb), KB(0,0), Q(qb,0), "0"), mf32(SS(qb), KB(0,1), Q(qb,1), SS(qb)))
    a("s_nop 11")
    rowmax(a, 0, 4, True); rowmax(a, 1, 5, True)
    set_cneg(a)
    a(f"s_waitcnt vmcnt({sim.need([('C', 0)])}) lgkmcnt(0)", "s_barrier")
    def rd(n, what):
        off = (n % 8) * 4096
        if what == 'k': return [f"ds_read_b128 {r4(KB(n+1,e))}, v3 offset:{off+2048+1024*e}" for e in range(2)]
        return [f"ds_read_b128 {r4(VB(n,e))}, v3 offset:{off+1024*e}" for e in range(2)]
    a(*rd(0, 'k'), *rd(0, 'v'))
    a(mf32(SS(0), KB(0,0), Q(0,0), CN(0)), mf32(SS(0), KB(0,1), Q(0,1), SS(0)), "s_nop 9", "s_mov_b32 s26, 0")
    a(";MARK0", f"{pfx}_loop:")
    def half(qb, t, extra):
        o = 1 - qb
        ks, vs = (t, t - 1) if qb == 0 else (t + 1, t)
        m = [mf32(SS(o), KB(ks,0), Q(o,0), CN(o)), mf32(SS(o), KB(ks,1), Q(o,1), SS(o)),
             mf32(OO(o), VB(vs,0), PP(o), OO(o)), mf16(LL(o), SEL, PP(o)),
             mf32(OO(o), VB(vs,1), PP(o)+4, OO(o)), mf16(LL(o), SEL, PP(o)+4)]
        v = softmax_ops(qb)
        cuts = [0, 4, 8, 13, 15, 20, 24]
        for i in range(6):
            yield from extra.get(('pre', i), [])
            yield m[i]
            yield from v[cuts[i]:cuts[i+1]]
            yield from extra.get(i, [])
    def body(c):
        for tt in range(8):
            t = 8 * c + tt
            ea, eb = {}, {}
            if cnt is not None:
                ea[2] = rd(t + 1, 'k')
                if tt == 0:
                    ea[2] = poll(4) + ea[2]
                    eb[1] = check(4, "s43", f"{pfx}_f") + dma(c + 1, 0) + dma(c + 1, 1)
                    eb[2] = dma(c + 1, 2) + dma(c + 1, 3)
                if tt == 1:
                    ea[0] = dma(c + 1, 4) + dma(c + 1, 5)
                    ea[3] = dma(c + 1, 6) + dma(c + 1, 7) + step
                if tt == 5: ea[0] = [('wait', 'c', [('C', c + 1)], "")] + arrive(0)
                if tt == 7: ea[1] = ["s_waitcnt lgkmcnt(0)"] + check(0, "s42", f"{pfx}_r") + arrive(4) + ["v_xor_b32 v3, 0x8000, v3"]
            elif tt == 7:
                ea[1] = [('wait', 'c', [('C', c + 1)], " lgkmcnt(0)"), "s_barrier", "v_xor_b32 v3, 0x8000, v3"]
                ea[2] = rd(t + 1, 'k')
                ea[3] = dma(c + 2, 0) + dma(c + 2, 1)
                ea[4] = dma(c + 2, 2) + dma(c + 2, 3)
                eb[1] = dma(c + 2, 4) + dma(c + 2, 5)
                eb[2] = dma(c + 2, 6) + dma(c + 2, 7) + step
            else:
                ea[2] = rd(t + 1, 'k')
            eb[0] = (poll(0) if cnt is not None and tt == 6 else []) + rd(t + 1, 'v')
            eb[('pre', 0)] = ["s_waitcnt lgkmcnt(2)"]
            yield from half(0, t, ea)
            yield from half(1, t, eb)
    a(*rolled_loop(sim, body, 8))
    a("s_add_u32 s26, s26, 1", "s_cmp_lt_u32 s26, 8", f"s_cbranch_scc1 {pfx}_loop")
    a(mf32(OO(1), VB(63,0), PP(1), OO(1)), mf16(LL(1), SEL, PP(1)), mf32(OO(1), VB(63,1), PP(1)+4, OO(1)), mf16(LL(1), SEL, PP(1)+4),
      "s_waitcnt lgkmcnt(0)", "s_mov_b32 s37, 0x4e800000", "s_nop 11",
      f"v_cmp_nle_f32 vcc, v{LL(0)}, s37", f"v_cmp_nle_f32 s[40:41], v{LL(1)}, s37", "s_nop 3", "s_or_b64 vcc, vcc, s[40:41]",
      f"s_cbranch_vccnz {pfx}_slow", f"{pfx}_fin:", ";MARK1")
    srd(a, 8, 28, 29, AF_BYTES, WS_AF)
    a(f"s_mul_i32 s37, s36, {AF_TB}", "s_lshl_b32 s38, s30, 11", "s_add_u32 s37, s37, s38", f"s_add_u32 s38, s37, {AF_TB}")
    for qb in range(2):
        a(f"v_rcp_f32 v4, v{LL(qb)}", "s_nop 0", "v_mov_b32 v5, v4")
        o, p = OO(qb), PP(qb)
        for i in range(8): a(f"v_pk_mul_f32 v[{o+2*i}:{o+2*i+1}], v[{o+2*i}:{o+2*i+1}], v[4:5]")
        for i in range(8): a(f"v_cvt_pk_bf16_f32 v{p+i}, v{o+2*i}, v{o+2*i+1}")
        for e in range(2):
            a(f"buffer_store_dwordx4 {r4(p+4*e)}, v2, s[8:11], s{37+qb} offen offset:{1024*e}" + (" sc1" if after_store else knob("AT_ST")))
    if after_store: after_store(a)
    a("s_endpgm")
    a(f"{pfx}_slow:", "s_waitcnt vmcnt(0)", "s_mov_b32 s39, 0", "v_mov_b32 v4, 0xff800000", "v_mov_b32 v5, 0xff800000", f"{pfx}_slow_max:")
    for e in range(2): a(f"buffer_load_dwordx4 {r4(KB(0,e))}, v2, s[12:15], s39 offen offset:{1024*e}")
    a("s_waitcnt vmcnt(0)")
    for qb in range(2): a(mf32(SS(qb), KB(0,0), Q(qb,0), "0"), mf32(SS(qb), KB(0,1), Q(qb,1), SS(qb)))
    a("s_nop 11")
    rowmax(a, 0, 4, False); rowmax(a, 1, 5, False)
    a("s_add_u32 s39, s39, 4096", "s_cmp_lt_u32 s39, 0x40000", f"s_cbranch_scc1 {pfx}_slow_max")
    set_cneg(a); zero_state(a)
    a("s_mov_b32 s39, 0", f"{pfx}_slow_pv:")
    for e in range(2):
        a(f"buffer_load_dwordx4 {r4(KB(0,e))}, v2, s[12:15], s39 offen offset:{1024*e}",
          f"buffer_load_dwordx4 {r4(VB(0,e))}, v2, s[12:15], s39 offen offset:{2048+1024*e}")
    a("s_waitcnt vmcnt(0)")
    for qb in range(2): a(mf32(SS(qb), KB(0,0), Q(qb,0), CN(qb)), mf32(SS(qb), KB(0,1), Q(qb,1), SS(qb)))
    a("s_nop 11")
    for qb in range(2): a(*softmax_ops(qb))
    a("s_nop 1")
    for qb in range(2):
        a(mf32(OO(qb), VB(0,0), PP(qb), OO(qb)), mf16(LL(qb), SEL, PP(qb)), mf32(OO(qb), VB(0,1), PP(qb)+4, OO(qb)), mf16(LL(qb), SEL, PP(qb)+4))
    a("s_add_u32 s39, s39, 4096", "s_cmp_lt_u32 s39, 0x40000", f"s_cbranch_scc1 {pfx}_slow_pv", "s_nop 11", f"s_branch {pfx}_fin")

def gen_attn():
    a = Asm()
    a("s_cmp_ge_u32 s2, 256", "s_cbranch_scc0 at_go", "s_endpgm", "at_go:",
      "s_load_dwordx2 s[28:29], s[0:1], 80",
      "v_lshrrev_b32 v1, 6, v0", "s_and_b32 s3, s2, 7", "v_readfirstlane_b32 s33, v1", "v_and_b32 v1, 63, v0",
      "s_lshr_b32 s31, s2, 3", "s_lshr_b32 s30, s31, 3", "s_lshl_b32 s3, s3, 2", "s_add_u32 s30, s30, s3", "s_and_b32 s31, s31, 7",
      "s_waitcnt lgkmcnt(0)")
    attn_body(a, prefetch=None if os.environ.get("NOPF") else prefetch_w2)
    return a.text(), dict(vgpr=192, accum=192, grid=256, block=256, lds=65536)
```

```python
S, D, H, F = 2048, 1024, 32, 3584
import os
WSB = int(os.environ.get("WSB", "0"), 0)
WS_XN, WS_Y, WS_Q, WS_KV, WS_AF = [WSB + o for o in (0x0, 0x400000, 0x800000, 0xC00000, 0x1400000)]
def knob(n, d=""):
    v = os.environ.get(n, d)
    return " " + v if v else ""
AF_KS = 288
AF_TB = AF_KS * 1024
AF_BYTES = 64 * AF_TB
WS_FLAG = 0x2800000

class Asm:
    def __init__(self):
        self.L = []
    def __call__(self, *lines):
        for s in lines:
            for t in s.split("\n"):
                t = t.strip()
                if t:
                    self.L.append(t if t.endswith(":") else "    " + t)
    def text(self):
        return "\n".join(self.L) + "\n"

def srd(a, d, lo, hi, size, off=0):
    if off:
        a(f"s_add_u32 s{d}, s{lo}, {hex(off)}", f"s_addc_u32 s{d+1}, s{hi}, 0")
    else:
        a(f"s_mov_b32 s{d}, s{lo}", f"s_mov_b32 s{d+1}, s{hi}")
    a(f"s_mov_b32 s{d+2}, {hex(size)}", f"s_mov_b32 s{d+3}, 0x20000")

class VmSim:
    def __init__(self):
        self.n = 0
        self.pos = {}
        self.done = 0
    def issue(self, tag=None):
        self.n += 1
        if tag is not None:
            self.pos[tag] = self.n
    def need(self, tags):
        p = [self.pos[t] for t in tags if t in self.pos and self.pos[t] > self.done]
        if not p:
            return None
        return self.n - max(p)
    def wait(self, tags):
        n = self.need(tags)
        if n is None:
            return "s_nop 0"
        self.done = self.n - n
        return f"s_waitcnt vmcnt({min(n, 63)})"

def rolled_loop(sim, body, iters):
    texts, waits = [], {}
    for it in range(iters):
        t = []
        for x in body(it):
            if isinstance(x, str):
                t.append(x)
            elif x[0] == 'vm':
                sim.issue(x[1]); t.append(x[2])
            else:
                n = sim.need(x[2])
                if n is not None:
                    waits[x[1]] = min(waits.get(x[1], 63), n)
                t.append(('W', x[1], x[3]))
        texts.append(t)
    for t in texts[1:]:
        assert t == texts[0], "loop body differs between iterations"
    return [x if isinstance(x, str) else f"s_waitcnt vmcnt({waits.get(x[1], 63)}){x[2]}" for x in texts[0]]

def kernel_header(name):
    return f".globl {name}\n.p2align 8\n.type {name},@function\n{name}:\n"

def kernel_desc(name, vgpr, accum, sgpr=102):
    return (f".p2align 6\n.amdhsa_kernel {name}\n  .amdhsa_next_free_vgpr {vgpr}\n  .amdhsa_next_free_sgpr {sgpr}\n"
            f"  .amdhsa_accum_offset {accum}\n  .amdhsa_group_segment_fixed_size 0\n  .amdhsa_kernarg_size 88\n"
            f"  .amdhsa_user_sgpr_count 2\n  .amdhsa_user_sgpr_kernarg_segment_ptr 1\n"
            f"  .amdhsa_system_sgpr_workgroup_id_x 1\n.end_amdhsa_kernel\n")
```

```python
from common import *

QSCALE = 0x3e8293ee
GC0, GC1 = 0xc0135761, 0xbdd2d3e8

def role(a, name, kind, pre_loop=None, tail=None, mid=None):
    NB = 7 if kind == 'h' else 6
    NPC = NB
    SLOT = 4096 * NPC
    ldb = 7168 if kind == 'h' else 6144
    nv, vbase = 12, 64
    def acc(nb, t):
        i = nb * 2 + t
        return ('v', vbase + 16 * i) if i < nv else ('a', 96 + 16 * (i - nv))
    def rng(p, n): return f"{p[0]}[{p[1]}:{p[1]+n-1}]"
    XR = lambda u, t: ('a', (u % 8) * 8 + 4 * t)
    WR = lambda nb: ('a', 64 + 4 * nb)
    a(f"{name}:")
    if kind == 'h':
        srd(a, 8, 6, 7, 1024 * ldb); srd(a, 20, 34, 35, F * 2)
    else:
        srd(a, 8, 4, 5, 1024 * ldb)
    xoff = WS_Y if kind == 'h' else WS_XN
    a("s_lshl_b32 s36, s31, 3", "s_lshl_b32 s37, s33, 1", "s_add_u32 s36, s36, s37",
      "s_lshl_b32 s37, s36, 16", f"s_add_u32 s37, s37, {hex(xoff)}",
      "s_add_u32 s12, s28, s37", "s_addc_u32 s13, s29, 0", "s_mov_b32 s14, 0x10000", "s_mov_b32 s15, 0x20000",
      "s_add_u32 s16, s12, 0x10000", "s_addc_u32 s17, s13, 0", "s_mov_b32 s18, 0x10000", "s_mov_b32 s19, 0x20000")
    sim = VmSim()
    a("v_lshlrev_b32 v2, 4, v1",
      "v_lshrrev_b32 v3, 5, v1", "v_lshlrev_b32 v3, 2, v3", "v_bfe_u32 v4, v1, 2, 2", "v_add_u32 v3, v3, v4",
      "s_lshl_b32 s37, s33, 4", "v_add_u32 v3, s37, v3", f"v_mul_u32_u24 v3, {ldb}, v3",
      "v_bfe_u32 v4, v1, 4, 1", "v_lshl_add_u32 v3, v4, 6, v3", "v_and_b32 v4, 3, v1", "v_lshl_add_u32 v3, v4, 4, v3",
      "s_lshl_b32 s39, s30, 1", "v_add_u32 v3, s39, v3", f"v_add_u32 v4, {8*ldb}, v3",
      "v_bfe_u32 v7, v1, 2, 2", "v_lshlrev_b32 v5, 6, v7",
      "v_bfe_u32 v7, v1, 4, 1", "v_lshl_add_u32 v5, v7, 5, v5", "v_and_b32 v7, 3, v1", "v_lshl_add_u32 v5, v7, 3, v5",
      "v_lshrrev_b32 v7, 5, v1")
    if kind == 'h':
        a("v_lshl_add_u32 v60, v7, 9, v5", f"v_add_u32 v61, {2*SLOT}, v60",
          "v_lshrrev_b32 v6, 2, v1", "v_add_u32 v6, s37, v6", f"v_mul_u32_u24 v6, {ldb}, v6", "v_and_b32 v62, 3, v1",
          "v_lshl_add_u32 v6, v62, 4, v6", "s_lshl_b32 s42, s41, 1", "v_add_u32 v6, s42, v6")
    a("v_mul_u32_u24 v7, 3072, v7", "v_add_u32 v5, v5, v7", f"v_add_u32 v7, {2*SLOT}, v5",
      f"s_mul_i32 s38, s33, {NPC*1024}", "s_mov_b32 s24, 0", "s_mov_b32 s25, 0")
    def dma(stage, p):
        m0 = (stage % 4) * SLOT + p * 1024
        if p == 6:
            return [f"s_add_u32 m0, s38, {m0}", "s_nop 0",
                    ('vm', ('W', stage), "buffer_load_dwordx4 v6, s[8:11], s24 offen" + knob("G1_WF") + " lds")]
        kpl, np_ = divmod(p, 3)
        if kind == 'h':
            return [f"s_add_u32 m0, s38, {m0 - np_*128}", "s_nop 0",
                    ('vm', ('W', stage), f"buffer_load_dwordx4 v{3+kpl}, s[8:11], s24 offen offset:{np_*128}" + knob("G1_WF") + " lds")]
        return [f"s_add_u32 m0, s38, {m0}", f"s_add_u32 s27, s24, {2048*np_}",
                ('vm', ('W', stage), f"buffer_load_dwordx4 v{3+kpl}, s[8:11], s27 offen" + knob("G1_WF") + " lds")]
    def xld(u):
        return [('vm', ('X', u), f"buffer_load_dwordx4 {rng(XR(u,t),4)}, v2, s[{12+4*t}:{15+4*t}], s25 offen offset:{(u%4)*1024}") for t in range(2)]
    def wrd(u, nb):
        s, j = divmod(u, 4)
        sl = s % 4
        r = WR(nb)[1]
        base = (sl % 2) * SLOT + j * NPC * 1024
        if nb == 6:
            return [f"ds_read_b64_tr_b16 a[{r+2*i}:{r+2*i+1}], v{60 if sl < 2 else 61} offset:{base+6144+256*i}" for i in range(2)]
        off = base + (nb // 2) * 1024 + (nb % 2) * 256
        return [f"ds_read_b64_tr_b16 a[{r+2*i}:{r+2*i+1}], v{5 if sl < 2 else 7} offset:{off+512*i}" for i in range(2)]
    first, second = list(range(3)), list(range(3, NPC))
    def emit(ops):
        for x in ops:
            if isinstance(x, str): a(x)
            else: sim.issue(x[1]); a(x[2])
    stepW, stepX = f"s_add_u32 s24, s24, {64*ldb}", "s_add_u32 s25, s25, 4096"
    for s in range(3):
        for p in (first + second if s < 2 else first): emit(dma(s, p))
        if s < 2: a(stepW)
    if kind == 'h':
        a("v_lshrrev_b32 v62, 5, v1", "v_lshlrev_b32 v62, 3, v62")
        for nb in range(NB):
            for g in range(4):
                r = 200 + 8 * nb + 2 * g
                a(f"buffer_load_dwordx2 v[{r}:{r+1}], v62, s[20:23], {'s39' if nb < 6 else 's42'} offen offset:{64*(nb%6)+16*g}"); sim.issue('bias')
    if pre_loop: pre_loop(a, sim)
    for u in range(7):
        emit(xld(u))
        if u == 3: a(stepX)
    if kind == 'h':
        a(f"s_waitcnt vmcnt({sim.need(['bias'])})", "s_mov_b32 s37, 0xffff0000")
        for nb in (0, 1, 2, 3, 4, 6, 5):
            for i in range(8):
                a(f"v_mov_b32 v{8+i}, v{200+8*nb+i}")
            for t in range(2):
                k, b = acc(nb, t)
                for i in range(8):
                    if k == 'v':
                        a(f"v_lshlrev_b32 v{b+2*i}, 16, v{8+i}", f"v_and_b32 v{b+2*i+1}, s37, v{8+i}")
                    else:
                        a(f"v_lshlrev_b32 v16, 16, v{8+i}", f"v_and_b32 v17, s37, v{8+i}",
                          f"v_accvgpr_write_b32 a{b+2*i}, v16", f"v_accvgpr_write_b32 a{b+2*i+1}, v17")
    else:
        for i in range(192): a(f"v_mov_b32 v{vbase+i}, 0")
    a(sim.wait([('W', 0)]), "s_barrier")
    for nb in range(NB): emit(wrd(0, nb))
    a(sim.wait([('X', 1)]))
    a(";MARK0", "s_mov_b32 s26, 0", f"{name}_loop:")
    def body(it):
        for u in range(16 * it, 16 * it + 16):
            s, j = divmod(u, 4)
            extra = [xld(u + 7) + ([stepX] if j == 0 else [])]
            if j == 3: extra += [dma(s + 3, p) for p in first]
            if j == 0: extra += [dma(s + 2, p) for p in second]; extra[-1] = extra[-1] + [stepW]
            yield ('wait', ('x', u % 16), [('X', u)], "")
            for nb in range(NB):
                yield f"s_waitcnt lgkmcnt({2*(NB-1)})"
                for t in range(2):
                    c, w, x = rng(acc(nb, t), 16), rng(WR(nb), 4), rng(XR(u, t), 4)
                    yield f"v_mfma_f32_32x32x16_bf16 {c}, {x}, {w}, {c}" if (kind == 'a' and nb >= 4) else f"v_mfma_f32_32x32x16_bf16 {c}, {w}, {x}, {c}"
                if j == 3 and nb == 0:
                    yield ('wait', ('w', u % 16), [('W', s + 1)], "")
                    yield "s_barrier"
                yield from wrd(u + 1, nb)
                if 1 <= nb <= len(extra):
                    yield from extra[nb - 1]
            assert len(extra) <= NB - 1
    a(*rolled_loop(sim, body, 4))
    a("s_add_u32 s26, s26, 1", "s_cmp_lt_u32 s26, 4", f"s_cbranch_scc1 {name}_loop")
    if mid: mid(a)
    a(";MARK1", "s_waitcnt vmcnt(0) lgkmcnt(0)", "s_nop 7", "s_nop 7")
    if kind == 'h':
        srd(a, 8, 28, 29, AF_BYTES, WS_AF)
        a(f"s_mul_i32 s37, s36, {AF_TB}", "s_add_u32 s37, s37, 0x10000", "s_lshl_b32 s39, s41, 6", "s_add_u32 s40, s37, s39",
          "s_lshl_b32 s39, s30, 6", "s_add_u32 s37, s37, s39")
        for i, c in enumerate((GC0, GC0, GC1, GC1, 0x3f800000, 0x3f800000)):
            a(f"v_mov_b32 v{8+i}, {hex(c)}")
    else:
        srd(a, 8, 28, 29, 3 * S * D * 2, WS_Q)
        a("s_lshl_b32 s37, s36, 11", "s_lshl_b32 s39, s32, 18", "s_add_u32 s37, s37, s39",
          "s_lshl_b32 s40, s37, 1", f"s_add_u32 s40, s40, {hex(WS_KV - WS_Q)}",
          f"v_mov_b32 v8, {hex(QSCALE)}", f"v_mov_b32 v9, {hex(QSCALE)}")
    blk = 0
    for nb in range(NB):
        for t in range(2):
            k, b = acc(nb, t)
            if k == 'a':
                dst = vbase + 16 * (blk % 2)
                for i in range(16): a(f"v_accvgpr_read_b32 v{dst+i}, a{b+i}")
                b = dst
            P = 16 + 8 * (blk % 2)
            pr = lambda r: f"v[{r}:{r+1}]"
            o0 = 0
            if kind == 'h':
                T, E = 32, 48
                for i in range(8): a(f"v_pk_mul_f32 {pr(T+2*i)}, {pr(b+2*i)}, {pr(b+2*i)}")
                for i in range(8): a(f"v_pk_fma_f32 {pr(T+2*i)}, {pr(T+2*i)}, v[10:11], v[8:9]")
                for i in range(8): a(f"v_pk_mul_f32 {pr(T+2*i)}, {pr(T+2*i)}, {pr(b+2*i)}")
                for i in range(16): a(f"v_exp_f32 v{E+i}, v{T+i}")
                for i in range(8): a(f"v_pk_add_f32 {pr(E+2*i)}, {pr(E+2*i)}, v[12:13]")
                for i in range(16): a(f"v_rcp_f32 v{T+i}, v{E+i}")
                for i in range(8): a(f"v_pk_mul_f32 {pr(b+2*i)}, {pr(b+2*i)}, {pr(T+2*i)}")
                a(f"s_add_u32 s39, {'s37' if nb < 6 else 's40'}, {(nb%6)*2048 + t*AF_TB}")
            elif nb < 2:
                for i in range(8): a(f"v_pk_mul_f32 {pr(b+2*i)}, {pr(b+2*i)}, v[8:9]")
                a(f"s_add_u32 s39, s37, {nb*64*2048 + t*2048}")
            else:
                a(f"s_add_u32 s39, s40, {(nb%2)*64*4096 + t*4096}")
                o0 = 2048 if nb >= 4 else 0
            for i in range(8): a(f"v_cvt_pk_bf16_f32 v{P+i}, v{b+2*i}, v{b+2*i+1}")
            for e in range(2):
                a(f"buffer_store_dwordx4 v[{P+4*e}:{P+4*e+3}], v2, s[8:11], s39 offen offset:{o0+1024*e}" + knob("G1_ST"))
            blk += 1
    a(";MARK2")
    if tail: tail(a)
    a("s_endpgm")

def gen_gemm1():
    a = Asm()
    a("s_cmp_ge_u32 s2, 256", "s_cbranch_scc0 g1_go", "s_endpgm", "g1_go:",
      "s_load_dwordx2 s[4:5], s[0:1], 8", "s_load_dwordx2 s[6:7], s[0:1], 32", "s_load_dwordx2 s[34:35], s[0:1], 40",
      "s_load_dwordx2 s[28:29], s[0:1], 80",
      "v_lshrrev_b32 v1, 6, v0", "s_and_b32 s3, s2, 7", "v_readfirstlane_b32 s33, v1", "v_and_b32 v1, 63, v0",
      "s_lshr_b32 s31, s2, 3", "s_lshr_b32 s32, s31, 3", "s_and_b32 s31, s31, 7")
    if os.environ.get("G1_MIX"):
        a("s_lshl_b32 s3, s3, 1", "s_and_b32 s36, s32, 1", "s_add_u32 s3, s3, s36", "s_lshr_b32 s32, s32, 1", "s_lshl_b32 s32, s32, 4",
          "s_add_u32 s32, s32, s3")
    else:
        a("s_lshl_b32 s3, s3, 2", "s_add_u32 s32, s32, s3")
    a("s_waitcnt lgkmcnt(0)",
      "s_cmp_ge_u32 s32, 16", "s_cbranch_scc1 g1_selh",
      "s_lshl_b32 s30, s32, 6", "s_branch g1_a",
      "g1_selh:", "s_sub_u32 s30, s32, 16", "s_mul_i32 s30, s30, 224",
      "s_add_u32 s41, s30, 192", "s_add_u32 s36, s30, 32", "s_bitcmp1_b32 s32, 0", "s_cselect_b32 s41, s30, s41", "s_cselect_b32 s30, s36, s30")
    role(a, "g1_h", 'h')
    def prefetch(a):
        a("s_load_dwordx2 s[44:45], s[0:1], 48", "s_load_dwordx2 s[48:49], s[0:1], 16",
          "s_lshl_b32 s37, s32, 3", "s_add_u32 s37, s37, s31", "s_lshl_b32 s37, s37, 2", "s_add_u32 s37, s37, s33",
          "s_mul_i32 s39, s37, 14336", "s_lshl_b32 s37, s37, 12",
          "v_lshlrev_b32 v10, 7, v1", "v_and_b32 v11, 0xfff, v10", "v_add_u32 v12, 0x1800, v10",
          f"s_mov_b32 s46, {F*D*2}", "s_mov_b32 s47, 0x20000", f"s_mov_b32 s50, {D*D*2}", "s_mov_b32 s51, 0x20000", "s_waitcnt lgkmcnt(0)",
          "buffer_load_dword v13, v10, s[44:47], s39 offen", "buffer_load_dword v14, v12, s[44:47], s39 offen",
          "buffer_load_dword v15, v11, s[48:51], s37 offen")
    if os.environ.get("SEQ"): role(a, "g1_a", 'a')
    else: role(a, "g1_a", 'a', tail=lambda a: (prefetch(a), a("s_waitcnt vmcnt(0)")))
    return a.text(), dict(vgpr=384, accum=256, grid=256, block=256, lds=114688)
```

```python
import os
from common import *
NOW, NOX = os.environ.get("G2_NOW"), os.environ.get("G2_NOX")
WF, XF = knob("G2_WF"), knob("G2_XF")

def gemm2_body(a, XD=8, ACC=64, pfx="g2", lds_base=0, fused=False):
    WD = 8
    acc = lambda j, fb: ACC + 32 * j + 16 * fb
    def XR(u, j):
        r = (u % XD) * 16 + 4 * j
        return f"v[{r}:{r+3}]" if fused and u % XD == 3 else f"a[{r}:{r+3}]"
    WR = lambda u, fb: (48 if fused else 16 * XD) + 8 * (u % 2) + 4 * fb
    RING = 16384 if fused else 24576
    sim = VmSim()
    srd(a, 8, 6, 7, F * D * 2)
    srd(a, 12, 28, 29, AF_BYTES, WS_AF)
    srd(a, 16, 34, 35, S * D * 2)
    srd(a, 20, 40, 41, D * 2)
    a("v_lshlrev_b32 v9, 4, v1", "s_lshl_b32 s36, s31, 2")
    for j in range(4):
        a(f"s_add_u32 s37, s33, {j}", "s_and_b32 s37, s37, 3", "s_add_u32 s37, s37, s36", f"s_mul_i32 s37, s37, {AF_TB}",
          f"v_add_u32 v{2+j}, s37, v9")
    a("v_lshrrev_b32 v6, 5, v1", "v_lshlrev_b32 v6, 2, v6", "v_bfe_u32 v7, v1, 2, 2", "v_add_u32 v6, v6, v7", "v_lshlrev_b32 v6, 11, v6",
      "v_bfe_u32 v7, v1, 4, 1", "v_lshl_add_u32 v6, v7, 6, v6", "v_and_b32 v7, 3, v1", "v_lshl_add_u32 v6, v7, 4, v6",
      "s_lshl_b32 s37, s30, 7", "v_add_u32 v6, s37, v6", f"v_add_u32 v7, {16384-1024}, v6",
      f"s_mul_i32 s38, s33, {RING}", f"s_add_u32 s38, s38, {lds_base}",
      "v_lshrrev_b32 v8, 5, v1", "v_lshlrev_b32 v8, 9, v8", "v_bfe_u32 v10, v1, 2, 2", "v_lshl_add_u32 v8, v10, 6, v8",
      "v_bfe_u32 v10, v1, 4, 1", "v_lshl_add_u32 v8, v10, 5, v8", "v_and_b32 v10, 3, v1", "v_lshl_add_u32 v8, v10, 3, v8",
      "v_add_u32 v8, s38, v8",
      f"s_mul_i32 s24, s33, {896*2048}", f"s_mul_i32 s25, s33, {56*1024}", f"s_add_u32 s25, s25, {64*1024}",
      "s_lshl_b32 s44, s33, 19", "s_lshl_b32 s45, s33, 14")
    def dma(u):
        if NOW and u > 0: return [[], []]
        return [[f"s_add_u32 m0, s38, {(u % WD) * 2048}", "s_nop 0", ('vm', ('W', u), "buffer_load_dwordx4 v6, s[8:11], s24 offen" + WF + " lds")],
                [('vm', ('W', u), "buffer_load_dwordx4 v7, s[8:11], s24 offen offset:1024" + WF + " lds"), "s_add_u32 s24, s24, 0x8000"]]
    def xld(u):
        o = [[('vm', ('X', u), f"buffer_load_dwordx4 {XR(u,j)}, v{2+j}, s[12:15], s25 offen offset:{(u%4)*1024}" + XF)] for j in range(4)]
        if NOX and u > 0: o = [[], [], [], []]
        if u % 4 == 3: o[3].append("s_add_u32 s25, s25, 4096")
        return o
    def wrd(u, fb):
        r = WR(u, fb)
        return [f"ds_read_b64_tr_b16 a[{r+2*i}:{r+2*i+1}], v8 offset:{(u%WD)*2048+1024*i+256*fb}" for i in range(2)]
    def emit(ops):
        for x in ops:
            if isinstance(x, str): a(x)
            elif x[0] == 'vm': sim.issue(x[1]); a(x[2])
            else:
                n = sim.need(x[2])
                if n is None: n = 63
                a(f"s_waitcnt vmcnt({min(n, 63)}){x[3]}")
    for u in range(-(WD - 1), 0):
        for x in dma(u + WD - 1): emit(x)
        if u + XD - 1 >= 0:
            for x in xld(u + XD - 1): emit(x)
        if u == -(WD - 1):
            a("s_lshl_b32 s37, s36, 5", "s_lshl_b32 s39, s33, 5", "s_add_u32 s37, s37, s39", "v_and_b32 v10, 31, v1", "v_add_u32 v10, s37, v10",
              "v_lshlrev_b32 v10, 11, v10", "v_lshrrev_b32 v11, 5, v1", "v_lshlrev_b32 v11, 4, v11", "s_lshl_b32 s37, s30, 7",
              "v_add_u32 v11, s37, v11", "v_add_u32 v10, v10, v11")
            for q in range(4):
                emit([('vm', 'res', f"buffer_load_dwordx4 v[{16+4*q}:{19+4*q}], v10, s[16:19], 0 offen offset:{32*q}"),
                      ('vm', 'res', f"buffer_load_dwordx4 v[{32+4*q}:{35+4*q}], v11, s[20:23], 0 offen offset:{32*q}")])
    for i in range(32, 128): a(f"v_mov_b32 v{ACC+i}, 0")
    emit([('wait', 0, ['res'], "")])
    a("s_mov_b32 s37, 0xffff0000")
    for q in range(4):
        d = ACC + 8 * q
        for i in range(4):
            a(f"v_lshlrev_b32 v{d+2*i}, 16, v{16+4*q+i}", f"v_and_b32 v{d+2*i+1}, s37, v{16+4*q+i}",
              f"v_lshlrev_b32 v12, 16, v{32+4*q+i}", f"v_and_b32 v13, s37, v{32+4*q+i}",
              f"v_add_f32 v{d+2*i}, v{d+2*i}, v12", f"v_add_f32 v{d+2*i+1}, v{d+2*i+1}, v13")
    a("s_nop 1")
    for q in range(4):
        for i in range(4): a(f"v_permlane32_swap_b32 v{ACC+8*q+i}, v{ACC+8*q+4+i}")
    if fused:
        srd(a, 16, 28, 29, 8192, WS_FLAG)
        a("s_lshl_b32 s37, s31, 2", "s_add_u32 s37, s37, s33", "s_lshl_b32 s37, s37, 7", "v_and_b32 v12, 15, v1", "v_lshlrev_b32 v12, 2, v12",
          "v_add_u32 v12, s37, v12", "s_barrier")
    emit([('wait', 0, [('W', 0)], "")])
    emit(wrd(0, 0) + wrd(0, 1))
    def step(u, last):
        ex = [[] for _ in range(8)]
        if u + WD - 1 < last:
            if (u + WD - 1) % 8 == 0:
                ex[0] += ["s_cmp_eq_u32 s26, 6", "s_cselect_b32 s8, s4, s8", "s_cselect_b32 s9, s5, s9",
                          f"s_cselect_b32 s10, {D*D*2}, s10", "s_cselect_b32 s24, s44, s24"]
            d = dma(u + WD - 1); ex[0] += d[0]; ex[1] += d[1]
        if u + 1 < last:
            ex[2] += [('wait', ('w', u % 8), [('W', u + 1)], "")] + wrd(u + 1, 0); ex[3] += wrd(u + 1, 1)
        if u + XD - 1 < last:
            if (u + XD - 1) % 8 == 0:
                ex[4] += ["s_cmp_eq_u32 s26, 6", "s_cselect_b32 s25, s45, s25"]
                if fused:
                    ex[4] += [f"s_cbranch_scc0 {pfx}_nowait", ";MARK3", "s_mov_b32 s37, 0", f"{pfx}_poll:",
                              "buffer_load_dword v13, v12, s[16:19], 0 offen sc1", "s_add_u32 s37, s37, 1", "s_waitcnt vmcnt(0)",
                              "v_cmp_eq_u32 vcc, 0, v13", "s_cmp_ge_u32 s37, 0x8000", f"s_cbranch_scc1 {pfx}_nowait",
                              f"s_cbranch_vccnz {pfx}_poll", f"{pfx}_nowait:"]
            for j, x in enumerate(xld(u + XD - 1)): ex[4 + j] += x
        yield ('wait', ('x', u % 8), [('X', u)], " lgkmcnt(0)")
        for fb in range(2):
            for j in range(4):
                c = f"v[{acc(j,fb)}:{acc(j,fb)+15}]"
                yield f"v_mfma_f32_32x32x16_bf16 {c}, a[{WR(u,fb)}:{WR(u,fb)+3}], {XR(u,j)}, {c}"
                yield from ex[4 * fb + j]
    def body(it):
        for u in range(8 * it, 8 * it + 8): yield from step(u, 1000)
    a(";MARK0", "s_mov_b32 s26, 0", f"{pfx}_loop:")
    a(*rolled_loop(sim, body, 8))
    a("s_add_u32 s26, s26, 1", "s_cmp_lt_u32 s26, 8", f"s_cbranch_scc1 {pfx}_loop")
    for u in range(64, 72): emit(step(u, 72))
    a(";MARK1")
    srd(a, 8, 42, 43, S * D * 2)
    if fused:
        lds_base = 0
        a("s_mul_i32 s38, s33, 24576", "s_barrier")
    a("v_add_u32 v2, s38, v9")
    for j in range(1, 4):
        a(f"s_sub_u32 s37, s33, {j}", "s_and_b32 s37, s37, 3", "s_mul_i32 s37, s37, 24576", f"s_add_u32 s37, s37, {lds_base + (j-1)*8192}",
          f"v_add_u32 v{2+j}, s37, v9")
    for fb in range(2):
        if fb == 1: a("s_nop 7")
        for j in range(1, 4):
            for g in range(4):
                r = acc(j, fb) + 4 * g
                a(f"ds_write_b128 v2, v[{r}:{r+3}] offset:{(j-1)*8192 + (fb*4+g)*1024}")
    a("s_waitcnt lgkmcnt(0)", "s_barrier", ";MARK2")
    for j in range(1, 4):
        for q in range(8):
            r = acc(j, 0) + 4 * q
            a(f"ds_read_b128 v[{r}:{r+3}], v{2+j} offset:{q*1024}")
    for j in range(1, 4):
        a(f"s_waitcnt lgkmcnt({min(15, 8*(3-j))})")
        for i in range(16):
            a(f"v_pk_add_f32 v[{ACC+2*i}:{ACC+2*i+1}], v[{ACC+2*i}:{ACC+2*i+1}], v[{ACC+32*j+2*i}:{ACC+32*j+2*i+1}]")
    for i in range(16): a(f"v_cvt_pk_bf16_f32 v{16+i}, v{ACC+2*i}, v{ACC+2*i+1}")
    a("s_nop 1")
    for q in range(4):
        for i in range(2): a(f"v_permlane32_swap_b32 v{16+4*q+i}, v{16+4*q+2+i}")
    a("s_nop 1")
    for q in range(4): a(f"buffer_store_dwordx4 v[{16+4*q}:{19+4*q}], v10, s[8:11], 0 offen offset:{32*q}" + knob("G2_ST"))
    a("s_endpgm")

def gemm2_entry(a):
    a("s_load_dwordx2 s[4:5], s[0:1], 16", "s_load_dwordx2 s[6:7], s[0:1], 48", "s_load_dwordx2 s[28:29], s[0:1], 80",
      "s_load_dwordx2 s[34:35], s[0:1], 0", "s_load_dwordx2 s[40:41], s[0:1], 56", "s_load_dwordx2 s[42:43], s[0:1], 64",
      "s_and_b32 s3, s2, 7", "s_lshr_b32 s32, s2, 3",
      "s_lshr_b32 s31, s3, 1", "s_lshl_b32 s31, s31, 2", "s_and_b32 s36, s32, 3", "s_add_u32 s31, s31, s36",
      "s_and_b32 s30, s3, 1", "s_lshl_b32 s30, s30, 3", "s_lshr_b32 s36, s32, 2", "s_add_u32 s30, s30, s36")

def gen_gemm2():
    a = Asm()
    a("s_cmp_ge_u32 s2, 256", "s_cbranch_scc0 g2_go", "s_endpgm", "g2_go:")
    gemm2_entry(a)
    a("v_lshrrev_b32 v1, 6, v0", "s_nop 0", "v_readfirstlane_b32 s33, v1", "v_and_b32 v1, 63, v0", "s_waitcnt lgkmcnt(0)")
    gemm2_body(a)
    return a.text(), dict(vgpr=192 + 144, accum=192, grid=256, block=256, lds=98304)

def gen_fused():
    from attn import attn_body
    a = Asm()
    a("s_cmp_ge_u32 s2, 256", "s_cbranch_scc0 f_go", "s_endpgm", "f_go:",
      "v_lshrrev_b32 v1, 6, v0", "s_nop 0", "v_readfirstlane_b32 s33, v1", "v_and_b32 v1, 63, v0", ";WAVE",
      "s_cmp_ge_u32 s33, 4", "s_cbranch_scc0 f_attn", "s_sub_u32 s33, s33, 4")
    if os.environ.get("PRIO_G"): a(f"s_setprio {os.environ['PRIO_G']}")
    gemm2_entry(a)
    a("s_waitcnt lgkmcnt(0)")
    gemm2_body(a, XD=4, lds_base=65536, fused=True)
    a("f_attn:", "s_load_dwordx2 s[28:29], s[0:1], 80", "s_and_b32 s3, s2, 7",
      "s_lshr_b32 s31, s2, 3", "s_lshr_b32 s30, s31, 3", "s_lshl_b32 s3, s3, 2", "s_add_u32 s30, s30, s3", "s_and_b32 s31, s31, 7")
    if os.environ.get("PRIO_A"): a(f"s_setprio {os.environ['PRIO_A']}")
    a("s_waitcnt lgkmcnt(0)")
    def publish(a):
        srd(a, 8, 28, 29, 8192, WS_FLAG)
        a("s_lshr_b32 s37, s36, 2", "s_lshl_b32 s37, s37, 2", "s_lshr_b32 s38, s30, 3", "s_add_u32 s37, s37, s38", "s_lshl_b32 s37, s37, 7",
          "s_and_b32 s38, s30, 7", "s_lshl_b32 s38, s38, 1", "s_and_b32 s39, s33, 1", "s_add_u32 s38, s38, s39", "s_lshl_b32 s38, s38, 2",
          "s_add_u32 s37, s37, s38", "v_mov_b32 v4, s37", "v_mov_b32 v5, 1", "s_mov_b64 exec, 1", "s_waitcnt vmcnt(0)",
          "buffer_store_dword v5, v4, s[8:11], 0 offen sc1")
    attn_body(a, after_store=publish, cnt=131072)
    return a.text(), dict(vgpr=256, accum=192, grid=256, block=512, lds=131072 + 64)
```

```python
import re
WS_DBG = 0x3000000
def instrument(body, kidx, marks=True):
    pre = ("    s_memtime s[80:81]\n    s_memrealtime s[82:83]\n    s_load_dwordx2 s[84:85], s[0:1], 80\n    s_mov_b32 s94, s2\n"
           "    s_mov_b32 s91, 0\n    s_mov_b32 s96, 0\n    s_mov_b32 s97, 0\n    s_mov_b32 s98, 0\n    s_mov_b32 s99, 0\n    v_mov_b32 v127, v0\n    s_waitcnt lgkmcnt(0)\n")
    post = ("    s_waitcnt vmcnt(0)\n    s_memtime s[86:87]\n    s_memrealtime s[88:89]\n    s_waitcnt lgkmcnt(0)\n"
            "    s_sub_u32 s86, s86, s80\n"
            f"    s_add_u32 s84, s84, {hex(WS_DBG + kidx * 0x10000)}\n    s_addc_u32 s85, s85, 0\n"
            "    s_mov_b32 s90, s86\n    s_mov_b32 s86, 0x10000\n    s_mov_b32 s87, 0x20000\n"
            "    v_mov_b32 v0, s82\n    v_mov_b32 v1, s88\n    v_mov_b32 v2, s90\n    v_mov_b32 v3, s96\n"
            "    v_mov_b32 v4, s97\n    v_mov_b32 v5, s98\n    v_mov_b32 v6, s99\n    v_mov_b32 v7, s91\n"
            "    s_lshl_b32 s94, s94, 3\n    s_and_b32 s95, s91, 7\n    s_add_u32 s94, s94, s95\n    s_lshl_b32 s94, s94, 5\n    v_mov_b32 v8, s94\n"
            "    s_mov_b64 exec, 1\n    s_nop 4\n"
            "    buffer_store_dwordx4 v[0:3], v8, s[84:87], 0 offen\n    buffer_store_dwordx4 v[4:7], v8, s[84:87], 0 offen offset:16\n"
            "    s_endpgm\n")
    body = re.sub(r";MARK(\d)", lambda m: f"s_memtime s[92:93]\n    s_waitcnt lgkmcnt(0)\n    s_sub_u32 s{96+int(m.group(1))}, s92, s80", body)
    body = body.replace("v_readfirstlane_b32 s33, v1\n", "v_readfirstlane_b32 s33, v1\n    s_mov_b32 s91, s33\n")
    return pre.replace("    v_mov_b32 v127, v0\n", "") + body.replace("    s_endpgm\n", post)
```

```python
import sys, os
sys.path.insert(0, os.path.dirname(__file__))
from common import *
from ln import gen_ln
from gemm1 import gen_gemm1
from attn import gen_attn
from gemm2 import gen_gemm2, gen_fused
from instr import instrument
NAME = "parallel_sum__softmax_full_mha__mixer_channel_mlp__prompt"
ROOT = os.path.join(os.path.dirname(os.path.abspath(__file__)), "..", "cdna_kernels")

def build(kernels, out):
    ref = open(os.path.join(ROOT, NAME + ".s.ref")).read().split("\n")
    head = [l for l in ref if l.startswith(";   offset") or l.startswith("; Kernarg")]
    txt, desc = [], []
    for i, (name, (body, m)) in enumerate(kernels):
        if os.environ.get("INSTR"): body = instrument(body, i)
        else: body = "".join(l for l in body.splitlines(True) if ";MARK" not in l and ";WAVE" not in l)
        head.append(f"; @launch kernel={name} grid=({m['grid']},1,1) block=({m['block']},1,1) lds={m['lds']}")
        if name in os.environ.get("DUP", "").split(","): head.append(head[-1])
        txt.append(kernel_header(name) + body)
        desc.append(kernel_desc(name, m['vgpr'], m['accum']))
    s = "\n".join(head) + '\n.amdgcn_target "amdgcn-amd-amdhsa--gfx950"\n.text\n' + "".join(txt) + '.section .rodata,"a"\n' + "".join(desc)
    open(out, "w").write(s)
    print(out, len(s), "bytes")

if __name__ == "__main__":
    out = sys.argv[1] if len(sys.argv) > 1 else os.path.join(ROOT, NAME + ".s")
    ks = [("ln_kernel", gen_ln()), ("gemm1_kernel", gen_gemm1())]
    ks += [("attn_kernel", gen_attn()), ("gemm2_kernel", gen_gemm2())] if os.environ.get("SEQ") else [("fused_kernel", gen_fused())]
    build(ks, out)
```
